```python
import torch

def _softmax(x, axis=-1):
    return torch.softmax(x, dim=axis)
def _gelu(x):
    return torch.nn.functional.gelu(x, approximate="tanh")
def _silu(x):
    return torch.nn.functional.silu(x)
def _sigmoid(x):
    return torch.sigmoid(x)
def _layernorm(x, axis=-1, eps=1e-5):
    m = x.mean(dim=axis, keepdim=True)
    v = x.var(dim=axis, keepdim=True, unbiased=False)
    return (x - m) / torch.sqrt(v + eps)
def _scatter_add(tgt, idx, src, axis=0):
    return tgt.clone().index_add_(axis, idx, src)
def _segment_sum(src, seg, n):
    out = torch.zeros((n,) + src.shape[1:], dtype=src.dtype)
    return out.index_add_(0, seg, src)
def _pad(x, pw):
    flat = tuple(v for pair in reversed(pw) for v in pair)
    return torch.nn.functional.pad(x, flat)

kernel_name = 'gated_mix__linear_attn_block__dense_activation_silu__prompt'

def setup_inputs():

    _w = (lambda a: (lambda t: t.to(torch.bfloat16) if t.is_floating_point() else t)(torch.as_tensor(a)))
    def _A_setup():
        B, S, D = 1, 2048, 512
        return {
            "x": _w((lambda *s: torch.randn(*s, dtype=torch.bfloat16) * 0.1)(B, S, D)),
            "wqkv": _w((lambda *s: torch.randn(*s, dtype=torch.bfloat16) * 0.8)(D, 3 * D)),
            "wo": _w((lambda *s: torch.randn(*s, dtype=torch.bfloat16) * 0.4)(D, D)),
        }
    _A_in = _A_setup()

    def _B_setup():
        B, S, D, F = 1, 2048, 512, 1376
        return {
            "x": _w((lambda *s: torch.randn(*s, dtype=torch.bfloat16) * 0.1)(B, S, D)),
            "w1": _w((lambda *s: torch.randn(*s, dtype=torch.bfloat16) * 3.2)(D, F) * (D ** -0.5)),
            "w2": _w((lambda *s: torch.randn(*s, dtype=torch.bfloat16) * 3.2)(F, D) * (F ** -0.5)),
        }
    _B_in = _B_setup()

    return {
        "A_x": _A_in["x"],
        "A_wqkv": _A_in["wqkv"],
        "A_wo": _A_in["wo"],
        "B_x": _B_in["x"],
        "B_w1": _B_in["w1"],
        "B_w2": _B_in["w2"],
        "gate_w": _w((lambda *s: torch.randn(*s, dtype=torch.bfloat16) * 0.1)(512) * 16.0),
    }

def reference(A_x, A_wqkv, A_wo, B_x, B_w1, B_w2, gate_w):
    def _A_ref(x, wqkv, wo):
        B, S, D = x.shape
        H = 32; Dh = D // H
        qkv = (lambda x, *d: x.permute(*d))((x @ wqkv).reshape(B, S, 3, H, Dh), 2, 0, 3, 1, 4)
        q, k, v = qkv[0], qkv[1], qkv[2]
        phi = lambda t: torch.where(t > 0, t + 1, torch.exp(t)) + 1e-6
        pq, pk = phi(q), phi(k)
        kv = torch.einsum("bhsd,bhse->bhde", pk, v)
        z = torch.einsum("bhsd->bhd", pk)
        num = torch.einsum("bhqd,bhde->bhqe", pq, kv)
        den = torch.einsum("bhqd,bhd->bhq", pq, z)[..., None] + 1e-6
        o = num / den
        return (lambda x, *d: x.permute(*d))(o, 0, 2, 1, 3).reshape(B, S, D) @ wo

    def _B_ref(x, w1, w2):
        h = torch.einsum("bsd,df->bsf", x, w1)
        h = _silu(h)
        out = torch.einsum("bsf,fd->bsd", h, w2)
        return out

    x = A_x
    g = _sigmoid((x * gate_w).sum(-1, keepdims=True))
    a = _A_ref(x, A_wqkv, A_wo)
    b = _B_ref(x, B_w1, B_w2)
    return g * a + (1 - g) * b
```

```python
NAME = "gated_mix__linear_attn_block__dense_activation_silu__prompt"

class Asm:
    def __init__(self):
        self.lines = []
        self.nlabel = 0
    def __call__(self, s):
        for l in s.split("\n"):
            l = l.strip()
            if l:
                self.lines.append("    " + l if not l.endswith(":") else l)
    def label(self, base="L"):
        self.nlabel += 1
        return f"{base}_{self.nlabel}"
    def text(self):
        return "\n".join(self.lines) + "\n"

def wrap(body, grid=256, block=256, lds=0, vgpr=512, accum=256, sgpr=102, header=""):
    return f"""{header}; @launch grid=({grid},1,1) block=({block},1,1) lds={lds}
.amdgcn_target "amdgcn-amd-amdhsa--gfx950"
.text
.globl {NAME}_kernel
.p2align 8
.type {NAME}_kernel,@function
{NAME}_kernel:
{body}
.section .rodata,"a"
.p2align 6
.amdhsa_kernel {NAME}_kernel
  .amdhsa_next_free_vgpr {vgpr}
  .amdhsa_next_free_sgpr {sgpr}
  .amdhsa_accum_offset {accum}
  .amdhsa_group_segment_fixed_size 0
  .amdhsa_kernarg_size 80
  .amdhsa_user_sgpr_count 2
  .amdhsa_user_sgpr_kernarg_segment_ptr 1
  .amdhsa_system_sgpr_workgroup_id_x 1
.end_amdhsa_kernel
"""

def srd(a, d, base, nbytes):
    a(f"s_mov_b32 s{d}, s{base}")
    a(f"s_and_b32 s{d+1}, s{base+1}, 0xffff")
    a(f"s_mov_b32 s{d+2}, {nbytes}")
    a(f"s_mov_b32 s{d+3}, 0x00020000")
```

```python
import sys, copy
from asmlib import NAME

KS_TOT = 118
WS_A = 0
WS_DUMP = 32 * KS_TOT * 2048
WS_KV = 0x780000
KV_STRIDE = 4352
WS_FA = 0x790000
WS_FK = 0x798000
WS_STAMP = 0x800000
WS_SIZE = 0x900000
HUGE = 0x40000000

SEC = 40960
def pair_off(k): return 2048 + 2048 * k
NPAIR = 19

S_X, S_W, S_W2, S_WO, S_WS, S_OUT, S_DBG, S_GATE = 4, 8, 12, 16, 20, 24, 28, 32
sSec, sX, sW0, sStr64 = 36, 37, 38, 39
sE, sO, sV, sWo = 40, 41, 42, 43
sAE, sAO, sAV, sAo = 44, 45, 46, 47
sSt, sSt5, sFlag, sNlo, sNhi = 48, 49, 50, 51, 52
sT0, sT1, sT2, sT3 = 53, 54, 55, 56
sI, sGrp, sRb2, sCb, sType = 57, 58, 59, 60, 61
sKv, sSpin = 62, 63
sMask = 64
sMaskG = 66
sTp = 68
sOutOff = 70
sFK = 71
STAMP0 = 72

vL = 1
vOffX = 2; vOffW = 6; vOffW3 = 8; vOffP = 10; vXr = 12; vG = 16; vWr = 17; vPr = 25; vL16 = 27
vGs = 28; vPoll = 29; vNon = 30
RING = 32; ACC0 = 64; ACC1 = 96; GACC = 128; GRING = 144
PK = 160; VF = 176; DKV = 192; TMP = 240

LOG2E = 0x3fb8aa3b
NLOG2E = 0xbfb8aa3b
EPS = 0x358637bd

class Prog:
    def __init__(self, stamps=False):
        self.lines = []
        self.vm_n = 0; self.vm_done = 0; self.vm_w = []
        self.lg_n = 0; self.lg_done = 0
        self.free = list(range(NPAIR))
        self.nlab = 0
        self.stamps = stamps
        self.nstamp = 0
        self.stamp_names = []
        self.prefix = "C"
    def __call__(self, s):
        for l in s.split("\n"):
            l = l.strip()
            if l: self.lines.append(l)
    def label(self, base):
        self.nlab += 1
        return f"{self.prefix}_{base}_{self.nlab}"
    def vm(self, s, w=1.0):
        self(s); self.vm_n += 1; self.vm_w.append(w); return self.vm_n - 1
    def lg(self, s):
        self(s); self.lg_n += 1
        assert self.lg_n - self.lg_done <= 15, "lgkm overflow"
        return self.lg_n - 1
    def wait(self, vm=None, lg=None):
        parts = []
        if vm is not None and vm >= self.vm_done:
            n = self.vm_n - vm - 1
            assert n <= 63
            parts.append(f"vmcnt({n})"); self.vm_done = vm + 1
        if lg is not None and lg >= self.lg_done:
            n = self.lg_n - lg - 1
            assert n <= 15
            parts.append(f"lgkmcnt({n})"); self.lg_done = lg + 1
        if parts:
            self("s_waitcnt " + " ".join(parts)); return True
        return False
    def outstanding(self): return sum(self.vm_w[self.vm_done:])
    def make_room(self, lim):
        k = self.vm_done
        while sum(self.vm_w[k:]) > lim: k += 1
        if k > self.vm_done: self.wait(vm=k - 1)
    def alloc_pair(self):
        k = self.free.pop(0); return k
    def alloc_x(self):
        for k in self.free:
            if k + 1 in self.free:
                self.free.remove(k); self.free.remove(k + 1); return k
        raise RuntimeError("no x slot")
    def can_x(self):
        return any(k + 1 in self.free for k in self.free)
    def release(self, *ks):
        for k in ks:
            assert k not in self.free
            self.free.append(k)
        self.free.sort()
    def stamp(self, name):
        if not self.stamps: return
        assert self.nstamp < 15
        r = STAMP0 + 2 * self.nstamp
        self(f"s_memtime s[{r}:{r+1}]")
        self.nstamp += 1; self.stamp_names.append(name)

def srd(p, d, base, nbytes):
    p(f"s_mov_b32 s{d}, s{base}")
    p(f"s_and_b32 s{d+1}, s{base+1}, 0xffff")
    p(f"s_mov_b32 s{d+2}, {nbytes}")
    p(f"s_mov_b32 s{d+3}, 0x00020000")

def vr(b, n): return f"v[{b}:{b+n-1}]"
def ar(b, n): return f"a[{b}:{b+n-1}]"
def sr(b, n=4): return f"s[{b}:{b+n-1}]"

def issue_x(p, c):
    k = p.alloc_x()
    p(f"s_add_u32 m0, s{sSec}, {pair_off(k)}")
    if c == 0:
        so = sX
        p("s_nop 0")
    else:
        p(f"s_add_u32 s{sT0}, s{sX}, {128*c}"); so = sT0
    last = None
    for b in range(4):
        off = f" offset:{1024*b}" if b else ""
        last = p.vm(f"buffer_load_dwordx4 v{vOffX+b}, {sr(S_X)}, s{so} offen{off} lds")
    return dict(pair=k, last=last)

def issue_pair(p, srdn, voff, so_expr):
    k = p.alloc_pair()
    p(f"s_add_u32 m0, s{sSec}, {pair_off(k)}")
    base, const = so_expr
    if const == 0:
        so = base; p("s_nop 0")
    elif isinstance(const, str):
        p(f"s_add_u32 s{sT0}, s{base}, {const}"); so = sT0
    else:
        p(f"s_add_u32 s{sT0}, s{base}, {const & 0xffffffff}"); so = sT0
    p.vm(f"buffer_load_dwordx4 v{voff}, {sr(srdn)}, s{so} offen lds")
    last = p.vm(f"buffer_load_dwordx4 v{voff+1}, {sr(srdn)}, s{so} offen offset:1024 lds")
    return dict(pair=k, last=last)

def wunit_expr(typ, ps, c):
    if typ == "Q":
        d = [0, 1024, -1024][ps]
        return (sW0, 64 * c * 3072 + d)
    return (sW0, 64 * c * 2752 + 128 * ps)

def p2_table():
    t = []
    def tile(wb, ab, j):
        for hh in range(2):
            t.append((S_W2, wb, j * 32768 + hh * 16384, ab, j * 4096, hh))
    tile(sE, sAE, 0); tile(sE, sAE, 1); tile(sO, sAO, 0); tile(sO, sAO, 1)
    tile(sE, sAE, 2); tile(sE, sAE, 3); tile(sO, sAO, 2); tile(sO, sAO, 3)
    tile(sE, sAE, 4); tile(sO, sAO, 4); tile(sV, sAV, 0)
    for j in range(4):
        for hh in range(2):
            t.append((S_WO, sWo, j * 32768 + hh * 16384, sAo, j * 4096, hh))
    return t
P2 = p2_table()
NU = len(P2)

def interleave(chains, width):
    out = []
    for i in range(0, len(chains), width):
        grp = chains[i:i + width]
        n = max(len(c) for c in grp)
        for j in range(n):
            for c in grp:
                if j < len(c): out.append(c[j])
    return out

def silu_ops(acc, tmp, dst):
    ops = []
    for h in range(2):
        chains = []
        for j in range(8):
            x = acc + 8 * h + j; t = tmp + j
            chains.append([(4, f"v_mul_f32 v{t}, 0x{NLOG2E:x}, v{x}"),
                           (8, f"v_exp_f32 v{t}, v{t}"),
                           (4, f"v_fma_f32 v{t}, v{t}, v{vGs}, v{vGs}"),
                           (8, f"v_rcp_f32 v{t}, v{t}"),
                           (4, f"v_mul_f32 v{t}, v{x}, v{t}")])
        ops += interleave(chains, 4)
        for j in range(4):
            ops.append((4, f"v_cvt_pk_bf16_f32 v{dst+4*h+j}, v{tmp+2*j}, v{tmp+2*j+1}"))
        ops.append((0, ("frag", h)))
    return ops

def phi_ops(acc, tmp, dst):
    ops = []
    for h in range(2):
        chains = []
        for j in range(8):
            x = acc + 8 * h + j; t = tmp + j
            chains.append([(4, f"v_mul_f32 v{t}, 0x{LOG2E:x}, v{x}"),
                           (8, f"v_exp_f32_e64 v{t}, v{t} clamp"),
                           (4, f"v_max_f32 v{x}, 0, v{x}"),
                           (4, f"v_add_f32 v{t}, v{t}, v{x}"),
                           (4, f"v_add_f32 v{t}, 0x{EPS:x}, v{t}")])
        ops += interleave(chains, 4)
        for j in range(4):
            ops.append((4, f"v_cvt_pk_bf16_f32 v{dst+4*h+j}, v{tmp+2*j}, v{tmp+2*j+1}"))
    return ops

def gate_ops(typ, t):
    o = [(4, f"v_cvt_pk_bf16_f32 v{t}, v{GACC}, v{GACC}"),
         (4, f"v_and_b32 v{t}, 0xffff0000, v{t}"),
         (4, f"v_mul_f32 v{t}, 0x{NLOG2E:x}, v{t}"),
         (8, f"v_exp_f32 v{t}, v{t}"),
         (4, "s_nop 0"),
         (4, f"v_add_f32 v{t}, 1.0, v{t}"),
         (8, f"v_rcp_f32 v{t}, v{t}"),
         (4, "s_nop 0"),
         (4, f"v_cvt_pk_bf16_f32 v{t}, v{t}, v{t}")]
    if typ == "Q":
        o.append((4, f"v_and_b32 v{vGs}, 0xffff0000, v{t}"))
    else:
        o += [(4, f"v_and_b32 v{t}, 0xffff0000, v{t}"),
              (4, f"v_sub_f32 v{t}, 1.0, v{t}"),
              (4, f"v_cvt_pk_bf16_f32 v{t}, v{t}, v{t}"),
              (4, f"v_and_b32 v{t}, 0xffff0000, v{t}"),
              (4, f"v_max_f32 v{t}, 0x0da24260, v{t}"),
              (8, f"v_rcp_f32 v{vGs}, v{t}"),
              (4, "s_nop 0")]
    return o

def spin_fail(p, lab_retry):
    p(f"s_add_u32 s{sSpin}, s{sSpin}, 1")
    p(f"s_cmp_lt_u32 s{sSpin}, 0x40000")
    p(f"s_cbranch_scc0 L_end")
    p("s_sleep 1")

def poll_issue(p, voff, soff, imm, dst):
    so = f"s{soff}" if soff is not None else "0"
    o = f" offset:{imm}" if imm else ""
    return p.vm(f"buffer_load_dwordx2 {vr(dst,2)}, v{voff}, {sr(S_WS)}, {so} offen{o} sc1", 0)

def poll_check(p, idx, voff, soff, imm, dst, stage, tmp):
    p.wait(vm=idx)
    Lc = p.label("pc"); Lok = p.label("pok")
    p(f"{Lc}:")
    p(f"s_add_u32 s{sT1}, s{sNlo}, {stage}")
    p(f"v_subrev_u32 v{tmp}, s{sT1}, v{dst}")
    p(f"v_cmp_eq_u32 {sr(sTp,2)}, s{sNhi}, v{dst+1}")
    p(f"v_cmp_ge_u32 vcc, {3-stage}, v{tmp}")
    p("s_nop 1")
    p(f"s_and_b64 vcc, vcc, {sr(sTp,2)}")
    p("s_cmp_eq_u64 vcc, -1")
    p(f"s_cbranch_scc1 {Lok}")
    spin_fail(p, Lc)
    so = f"s{soff}" if soff is not None else "0"
    o = f" offset:{imm}" if imm else ""
    p(f"buffer_load_dwordx2 {vr(dst,2)}, v{voff}, {sr(S_WS)}, {so} offen{o} sc1")
    p("s_waitcnt vmcnt(0)")
    p(f"s_branch {Lc}")
    p(f"{Lok}:")

def nonce_issue(p):
    p(f"v_mov_b32 v{vNon}, 0")
    return p.vm(f"buffer_load_dwordx2 {vr(vNon,2)}, v{vNon}, {sr(S_DBG)}, 0 offen sc1", 0)

def nonce_check(p, idx):
    p.wait(vm=idx)
    Lc = p.label("nc"); Lok = p.label("nok")
    p(f"{Lc}:")
    p(f"v_readfirstlane_b32 s{sNlo}, v{vNon}")
    p(f"v_readfirstlane_b32 s{sNhi}, v{vNon+1}")
    p("s_nop 1")
    p(f"s_cmp_lg_u32 s{sNhi}, 0")
    p(f"s_cbranch_scc1 {Lok}")
    spin_fail(p, Lc)
    p(f"v_mov_b32 v{vNon}, 0")
    p(f"buffer_load_dwordx2 {vr(vNon,2)}, v{vNon}, {sr(S_DBG)}, 0 offen sc1")
    p("s_waitcnt vmcnt(0)")
    p(f"s_branch {Lc}")
    p(f"{Lok}:")

def flag_store(p, soff, stage, tmp):
    p(f"s_add_u32 s{sT1}, s{sNlo}, {stage}")
    p(f"v_mov_b32 v{tmp}, s{sT1}")
    p(f"v_mov_b32 v{tmp+1}, s{sNhi}")
    p(f"v_mov_b32 v{tmp+2}, 0")
    p("s_mov_b64 exec, 1")
    i = p.vm(f"buffer_store_dwordx2 {vr(tmp,2)}, v{tmp+2}, {sr(S_WS)}, s{soff} offen sc1", 0)
    p("s_mov_b64 exec, -1")
    return i

def prologue(p, cfg):
    p("s_cmp_ge_u32 s2, 256")
    p("s_cbranch_scc1 L_end")
    p.stamp("start")
    p("s_load_dwordx4 s[84:87], s[0:1], 0")
    p("s_load_dwordx4 s[88:91], s[0:1], 32")
    p("s_load_dwordx8 s[92:99], s[0:1], 48")
    p("s_load_dwordx2 s[100:101], s[0:1], 16")
    p("s_getpc_b64 s[68:69]")
    p("L_pc:")
    p(f"v_lshrrev_b32 v2, 6, v0")
    p(f"v_and_b32 v{vL}, 63, v0")
    p("s_lshr_b32 s53, s2, 3")
    p("v_readfirstlane_b32 s3, v2")
    p("s_lshl_b32 s54, s53, 11")
    p("v_lshlrev_b32 v3, 3, v0")
    p("v_add_u32 v3, s54, v3")
    p("v_min_u32 v3, L_code_end-L_pc-8, v3")
    p.vm(f"global_load_dwordx2 v[254:255], v3, s[68:69]")
    p("s_and_b32 s54, s2, 7")
    p("s_and_b32 s55, s53, 3")
    p("s_and_b32 s56, s54, 3")
    p(f"s_lshl2_add_u32 s{sI}, s56, s55")
    p(f"s_lshl2_add_u32 s{sRb2}, s54, s55")
    p(f"s_lshr_b32 s{sCb}, s53, 2")
    p(f"s_and_b32 s{sType}, s{sCb}, 1")
    p("s_lshr_b32 s54, s54, 2")
    p("s_lshr_b32 s55, s53, 3")
    p(f"s_lshl2_add_u32 s{sGrp}, s54, s55")
    p(f"s_mul_i32 s{sSec}, s3, {SEC}")
    p(f"s_lshl2_add_u32 s{sX}, s{sI}, s3")
    p(f"s_lshl_b32 s{sX}, s{sX}, 15")
    p(f"v_lshrrev_b32 v6, 3, v{vL}")
    p(f"v_and_b32 v7, 7, v{vL}")
    p(f"v_lshrrev_b32 v8, 4, v{vL}")
    p(f"v_xor_b32 v9, v7, v8")
    p(f"v_xor_b32 v10, 4, v9")
    p(f"v_lshlrev_b32 v11, 10, v6")
    p(f"v_lshl_add_u32 v{vOffX}, v9, 4, v11")
    p(f"v_lshl_add_u32 v{vOffX+1}, v10, 4, v11")
    p(f"v_add_u32 v{vOffX+2}, {14*1024}, v{vOffX}")
    p(f"v_add_u32 v{vOffX+1}, {7*1024}, v{vOffX+1}")
    p(f"v_add_u32 v{vOffX+3}, {14*1024}, v{vOffX+1}")
    p(f"v_and_b32 v8, 1, v8")
    p(f"v_lshlrev_b32 v8, 2, v8")
    p(f"v_xor_b32 v9, v7, v8")
    p(f"v_lshlrev_b32 v9, 4, v9")
    p(f"s_mul_i32 s53, s{sGrp}, 11")
    p("s_add_u32 s53, s53, 1")
    p("s_lshr_b32 s53, s53, 1")
    p("s_min_u32 s53, s53, 38")
    p("s_lshl_b32 s54, s53, 6")
    p(f"s_lshl_b32 s55, s{sGrp}, 7")
    p("s_add_u32 s55, s55, 1024")
    p("s_movk_i32 s56, 2752")
    p(f"s_cmp_eq_u32 s{sType}, 0")
    p("s_cselect_b32 s56, 3072, s56")
    p("s_cselect_b32 s54, s55, s54")
    p(f"s_lshl_b32 s{sStr64}, s56, 6")
    p(f"s_mul_i32 s{sW0}, s3, s56")
    p(f"s_lshl_b32 s{sW0}, s{sW0}, 4")
    p(f"s_add_u32 s{sW0}, s{sW0}, s54")
    p(f"v_mad_u32_u24 v{vOffW}, v6, s56, v9")
    p("s_lshl_b32 s55, s56, 3")
    p("s_sub_u32 s55, s55, 1024")
    p(f"v_add_u32 v{vOffP}, v11, v9")
    p(f"v_add_u32 v{vOffW+1}, s55, v{vOffW}")
    p(f"v_lshlrev_b32 v{vL16}, 4, v{vL}")
    p(f"s_mov_b32 s{sSt5}, s53")
    p("s_waitcnt lgkmcnt(0)")
    srd(p, S_X, 84, 2048 * 512 * 2)
    srd(p, S_GATE, 92, 1024)
    p(f"s_cmp_eq_u32 s{sType}, 0")
    p(f"s_cselect_b32 s{S_W}, s86, s88")
    p(f"s_cselect_b32 s{S_W+1}, s87, s89")
    p(f"s_and_b32 s{S_W+1}, s{S_W+1}, 0xffff")
    p(f"s_mov_b32 s{S_W+2}, {512*1376*2}")
    p(f"s_cmp_eq_u32 s{sType}, 0")
    p(f"s_cselect_b32 s{S_W+2}, {512*1536*2}, s{S_W+2}")
    p(f"s_mov_b32 s{S_W+3}, 0x00020000")
    srd(p, S_WS, 98, WS_SIZE)
    p("s_cmp_eq_u32 s2, 255")
    p("s_cbranch_scc0 L_nozero")
    p("v_mov_b32 v240, 0\nv_mov_b32 v241, 0\nv_mov_b32 v242, 0\nv_mov_b32 v243, 0")
    p(f"s_mul_i32 s53, s3, {9*1024}")
    p(f"s_add_u32 s53, s53, {WS_KV}")
    for k in range(9):
        if k % 4 == 0 and k:
            p("s_add_u32 s53, s53, 4096")
        o = f" offset:{(k%4)*1024}" if k % 4 else ""
        p(f"buffer_store_dwordx4 v[240:243], v{vL16}, {sr(S_WS)}, s53 offen{o} sc1")
    p("L_nozero:")
    st = {}
    p(f"s_mov_b32 m0, s{sSec}")
    p("s_nop 0")
    st["gate"] = p.vm(f"buffer_load_dwordx4 v{vL16}, {sr(S_GATE)}, 0 offen lds")
    st["x"] = {}; st["w"] = {}
    st["x"][0] = issue_x(p, 0)
    st["w"][0] = issue_pair(p, S_W, vOffW, (sW0, 0))
    st["x"][1] = issue_x(p, 1)
    st["w"][1] = issue_pair(p, S_W, vOffW, (sW0, f"s{sStr64}"))
    srd(p, S_W2, 90, 1376 * 512 * 2)
    srd(p, S_WO, 100, 512 * 512 * 2)
    srd(p, S_OUT, 94, 2048 * 512 * 2)
    srd(p, S_DBG, 96, 256)
    p(f"v_add_u32 v{vOffP+1}, {7*1024}, v{vOffP}")
    p(f"s_and_b32 s53, s{sGrp}, 1")
    p(f"s_cmp_ge_u32 s{sGrp}, 6")
    p("s_cselect_b32 s53, 1, s53")
    p(f"s_mul_i32 s54, s53, {HUGE >> 6}")
    p("v_and_b32 v8, 64, v9")
    p("v_mul_lo_u32 v9, v8, s54")
    p(f"v_add_u32 v{vOffW3}, v9, v{vOffW}")
    p(f"v_add_u32 v{vOffW3+1}, v9, v{vOffW+1}")
    p(f"v_and_b32 v31, 31, v{vL}")
    p(f"v_lshrrev_b32 v30, 5, v{vL}")
    p(f"v_lshrrev_b32 v29, 3, v31")
    p(f"v_lshlrev_b32 v29, 10, v29")
    p(f"v_and_b32 v28, 7, v31")
    p(f"v_lshl_add_u32 v29, v28, 7, v29")
    p(f"v_add_u32 v29, s{sSec}, v29")
    p(f"v_bfe_u32 v28, v31, 1, 3")
    p(f"v_xor_b32 v28, v28, v30")
    for s in range(4):
        p(f"v_xor_b32 v{vXr+s}, {2*s}, v28")
        p(f"v_lshl_add_u32 v{vXr+s}, v{vXr+s}, 4, v29")
    p(f"v_lshlrev_b32 v{vG}, 4, v30")
    p(f"v_add_u32 v{vG}, s{sSec}, v{vG}")
    p(f"v_bfe_u32 v28, v{vL}, 2, 2")
    p(f"v_lshlrev_b32 v28, 7, v28")
    p(f"v_and_b32 v29, 3, v{vL}")
    p(f"v_lshl_add_u32 v28, v29, 3, v28")
    p(f"v_bfe_u32 v29, v{vL}, 4, 1")
    p(f"v_lshl_add_u32 v28, v29, 5, v28")
    p(f"v_bfe_u32 v29, v{vL}, 3, 1")
    p(f"v_lshl_add_u32 v28, v29, 6, v28")
    p(f"v_lshl_add_u32 v{vWr}, v30, 10, v28")
    p(f"v_xor_b32 v{vWr+1}, 64, v{vWr}")
    for sec in range(1, 4):
        p(f"v_add_u32 v{vWr+2*sec}, {SEC*sec}, v{vWr}")
        p(f"v_add_u32 v{vWr+2*sec+1}, {SEC*sec}, v{vWr+1}")
    p(f"v_lshl_add_u32 v{vPr}, v30, 9, v28")
    p(f"v_xor_b32 v{vPr+1}, 64, v{vPr}")
    p(f"v_add_u32 v{vPr}, s{sSec}, v{vPr}")
    p(f"v_add_u32 v{vPr+1}, s{sSec}, v{vPr+1}")
    p(f"v_and_b32 v{vPoll}, 3, v{vL}")
    p(f"v_lshlrev_b32 v{vPoll}, 3, v{vPoll}")
    p(f"s_lshl2_add_u32 s53, s{sRb2}, s3")
    p(f"s_lshl_b32 s53, s53, 7")
    p(f"s_add_u32 s53, s53, {WS_FA}")
    p(f"v_add_u32 v{vPoll}, s53, v{vPoll}")
    p(f"s_mov_b32 s{sMask}, 0xffff0000")
    p(f"s_mov_b32 s{sMask+1}, 0xffff0000")
    p(f"s_mov_b32 s{sMaskG}, 0")
    p(f"s_mov_b32 s{sMaskG+1}, -1")
    p(f"s_mov_b32 s{sSpin}, 0")
    p(f"s_mul_i32 s53, s3, 11")
    p(f"s_add_u32 s54, s53, 6")
    p(f"s_min_u32 s54, s54, 38")
    p(f"s_lshl_b32 s55, s{sCb}, 7")
    p(f"s_lshl_b32 s{sE}, s53, 15")
    p(f"s_add_u32 s{sE}, s{sE}, s55")
    p(f"s_lshl_b32 s{sO}, s54, 15")
    p(f"s_add_u32 s{sO}, s{sO}, s55")
    p(f"s_lshl_b32 s{sWo}, s3, 17")
    p(f"s_add_u32 s{sWo}, s{sWo}, s55")
    p(f"s_mul_i32 s55, s{sRb2}, {KS_TOT*2048}")
    p(f"s_lshl_b32 s{sAE}, s53, 12")
    p(f"s_add_u32 s{sAE}, s{sAE}, s55")
    p(f"s_lshl_b32 s{sAO}, s54, 12")
    p(f"s_add_u32 s{sAO}, s{sAO}, s55")
    p(f"s_lshl_b32 s{sAo}, s3, 14")
    p(f"s_add_u32 s{sAo}, s{sAo}, s55")
    p(f"s_add_u32 s{sAo}, s{sAo}, {86*2048}")
    p(f"s_add_u32 s{sV}, s{sE}, {5*32768}")
    p(f"s_add_u32 s{sAV}, s{sAE}, {5*4096}")
    p("s_cmp_eq_u32 s3, 3")
    p(f"s_cselect_b32 s{sV}, {HUGE}, s{sV}")
    p(f"s_cselect_b32 s{sAV}, {HUGE}, s{sAV}")
    p(f"s_lshr_b32 s53, s3, 1")
    p(f"s_lshl1_add_u32 s53, s{sI}, s53")
    p(f"s_and_b32 s54, s3, 1")
    p(f"s_mul_i32 s{sSt}, s53, {KS_TOT*2048}")
    p(f"s_lshl_b32 s55, s54, 10")
    p(f"s_add_u32 s{sSt}, s{sSt}, s55")
    p(f"s_lshl_b32 s55, s{sSt5}, 12")
    p(f"s_lshl_b32 s56, s{sGrp}, 13")
    p(f"s_add_u32 s56, s56, {86*2048}")
    p(f"s_cmp_eq_u32 s{sType}, 0")
    p(f"s_cselect_b32 s55, s56, s55")
    p(f"s_add_u32 s{sSt}, s{sSt}, s55")
    p(f"s_add_u32 s{sSt5}, s{sSt}, {5*4096}")
    p(f"s_and_b32 s55, s{sGrp}, 1")
    p(f"s_cmp_ge_u32 s{sGrp}, 6")
    p("s_cselect_b32 s55, 1, s55")
    p("s_cmp_eq_u32 s55, 1")
    p(f"s_cselect_b32 s{sSt5}, {HUGE}, s{sSt5}")
    p(f"s_lshr_b32 s55, s{sGrp}, 1")
    p(f"s_lshl2_add_u32 s53, s53, s55")
    p(f"s_lshl_b32 s53, s53, 7")
    p(f"s_and_b32 s55, s{sGrp}, 1")
    p(f"s_lshl1_add_u32 s55, s{sType}, s55")
    p(f"s_lshl1_add_u32 s55, s55, s54")
    p(f"s_lshl3_add_u32 s53, s55, s53")
    p(f"s_add_u32 s{sFlag}, s53, {WS_FA}")
    p(f"s_mul_i32 s{sKv}, s{sGrp}, {KV_STRIDE}")
    p(f"s_add_u32 s{sKv}, s{sKv}, {WS_KV}")
    p(f"s_lshl_b32 s{sFK}, s{sGrp}, 9")
    p(f"s_add_u32 s{sFK}, s{sFK}, {WS_FK}")
    p(f"s_lshl2_add_u32 s53, s{sRb2}, s3")
    p(f"s_lshl_b32 s53, s53, 14")
    p(f"s_lshl_b32 s54, s{sCb}, 7")
    p(f"s_add_u32 s{sOutOff}, s53, s54")
    p(f"s_cmp_eq_u32 s{sType}, 0")
    p("s_cbranch_scc0 L_pathH")
    return st

def mfma(d, a, b, c):
    return f"v_mfma_f32_32x32x16_bf16 {vr(d,16)}, {a}, {b}, {c}"

def path(p, typ, st, cfg):
    D = 2
    xs = dict(st["x"]); ws = dict(st["w"])
    pu = {}
    queue = []
    for c in range(2, 8):
        queue.append(("x", c)); queue.append(("w", c))
    for s in range(8, 24): queue.append(("w", s))
    for u in range(NU): queue.append(("p", u))
    def issue_next(reserve=0):
        if not queue: return 0
        kind, a = queue[0]
        if kind == "x":
            if not p.can_x(): return 0
            queue.pop(0); xs[a] = issue_x(p, a); return 4
        if len(p.free) <= reserve: return 0
        queue.pop(0)
        if kind == "w":
            ps, c = divmod(a, 8)
            voff = vOffW3 if (typ == "H" and ps == 2) else vOffW
            ws[a] = issue_pair(p, S_W, voff, wunit_expr(typ, ps, c))
        else:
            srdn, wb, wc = P2[a][:3]
            pu[a] = issue_pair(p, srdn, vOffP, (wb, wc))
        return 2

    NK = 96
    rd = {}
    xrd_last = {}
    def ring(ks): return RING + 8 * (ks % 4)
    def gring(ks): return GRING + 4 * (ks % 4)
    barrier_hooks = []
    state = dict(bar=0)
    def enter_stage(s):
        v = ws[s]["last"]
        if s < 8: v = max(v, xs[s]["last"])
        pre = [h for h in barrier_hooks if h[0] == "pre"]
        lgw = None
        for h in pre:
            lgw = h[1]; barrier_hooks.remove(h)
        p.wait(vm=v, lg=lgw)
        p("s_barrier")
        state["bar"] += 1
        if s == 0:
            L = p.label("nn")
            p("s_cmp_eq_u32 s2, 255")
            p(f"s_cbranch_scc0 {L}")
            p("s_cmp_eq_u32 s3, 0")
            p(f"s_cbranch_scc0 {L}")
            p(f"s_memrealtime s[68:69]")
            p("s_waitcnt lgkmcnt(0)")
            p("s_lshr_b32 s53, s68, 30")
            p("s_lshl2_add_u32 s53, s69, s53")
            p("s_or_b32 s53, s53, 0x80000000")
            p("s_lshl_b32 s54, s68, 2")
            p(f"v_mov_b32 v{TMP}, s54")
            p(f"v_mov_b32 v{TMP+1}, s53")
            p(f"v_mov_b32 v{TMP+2}, 0")
            p("s_mov_b64 exec, 1")
            p(f"buffer_store_dwordx2 {vr(TMP,2)}, v{TMP+2}, {sr(S_DBG)}, 0 offen sc1")
            p("s_mov_b64 exec, -1")
            p(f"{L}:")
        if s >= 2:
            p.release(ws[s - 2]["pair"])
        for h in list(barrier_hooks):
            if h[0] == "post":
                barrier_hooks.remove(h); h[1]()
    def reads(ks):
        ps, kk = divmod(ks, 32); c, s = divmod(kk, 4); stg = ps * 8 + c
        if s == 0: enter_stage(stg)
        last = None
        if ps == 0:
            k = xs[c]["pair"]
            last = p.lg(f"ds_read_b128 {ar(4*kk,4)}, v{vXr+s} offset:{pair_off(k)}")
            if s == 3: xrd_last[c] = last
            last = p.lg(f"ds_read_b128 {vr(gring(ks),4)}, v{vG} offset:{32*kk}")
        k = ws[stg]["pair"]
        for t in range(2):
            for h in range(2):
                last = p.lg(f"ds_read_b64_tr_b16 {vr(ring(ks)+4*t+2*h,2)}, v{vWr+2*s+t} offset:{pair_off(k)+512*h}")
        rd[ks] = last

    fill = []
    def run_fill(budget):
        spent = 0
        while fill and spent < budget:
            cost, item = fill.pop(0)
            if callable(item): item()
            else: p(item)
            spent += cost
        return spent

    pend = {}
    def h_store(tile_in_wg, dstregs):
        def mk(h):
            def f():
                if tile_in_wg == 5:
                    base, off = sSt5, h * 2048
                    so = base
                else:
                    if tile_in_wg == 0: so = sSt
                    else:
                        p(f"s_add_u32 s{sT2}, s{sSt}, {tile_in_wg*4096}"); so = sT2
                    off = h * 2048
                o = f" offset:{off}" if off else ""
                pend["st"] = p.vm(f"buffer_store_dwordx4 {vr(dstregs+4*h,4)}, v{vL16}, {sr(S_WS)}, s{so} offen{o} sc1")
            return f
        return mk
    def silu_fill(acc, ps):
        out = []
        for t in range(2):
            dst = PK + 8 * t + 16 * (ps % 2)
            mk = h_store(2 * ps + t, dst)
            for cost, it in silu_ops(acc + 16 * t, TMP, dst):
                if isinstance(it, tuple): out.append((8, mk(it[1])))
                else: out.append((cost, it))
        return out

    def kv_sequence():
        out = []
        for t in range(2):
            for j in range(8):
                out.append((4, f"v_cvt_pk_bf16_f32 v{VF+8*t+j}, v{ACC1+16*t+2*j}, v{ACC1+16*t+2*j+1}"))
        out.append((4, f"v_mov_b32 v{TMP+8}, 0x3f803f80"))
        out.append((4, f"v_cndmask_b32 v{TMP}, v{TMP+8}, 0, {sr(sMask,2)}"))
        out.append((4, f"v_cndmask_b32 v{TMP+4}, 0, v{TMP+8}, {sr(sMask,2)}"))
        for j in range(1, 4):
            out.append((4, f"v_mov_b32 v{TMP+j}, v{TMP}"))
            out.append((4, f"v_mov_b32 v{TMP+4+j}, v{TMP+4}"))
        out.append((8, "s_nop 1"))
        for t in range(2):
            for h in range(2):
                c = "0" if h == 0 else vr(DKV+16*t, 16)
                out.append((32, mfma(DKV+16*t, vr(PK+8*t+4*h,4), vr(VF+8*t+4*h,4), c)))
        for t in range(2):
            for h in range(2):
                c = "0" if (t == 0 and h == 0) else vr(DKV+32, 16)
                out.append((32, mfma(DKV+32, vr(TMP+4*t,4), vr(PK+8*t+4*h,4), c)))
        out.append((40, "s_nop 11"))
        for t in range(2):
            for r in range(8):
                out.append((4, f"v_cndmask_b32 v{VF+8*t+r}, v{DKV+16*t+r}, v{DKV+16*t+8+r}, {sr(sMask,2)}"))
        out.append((4, f"v_cndmask_b32 v{TMP}, v{DKV+32}, v{DKV+40}, {sr(sMaskG,2)}"))
        def wr():
            k0 = p.alloc_pair(); k1 = p.alloc_pair()
            pend["kvp"] = (k0, k1)
            p(f"v_add_u32 v{TMP+1}, s{sSec}, v{vL16}")
            p(f"v_lshrrev_b32 v{TMP+2}, 2, v{vL16}")
            p(f"v_add_u32 v{TMP+3}, s{sSec}, v{TMP+2}")
            for q in range(4):
                off = pair_off((k0, k1)[q // 2]) + 1024 * (q % 2)
                p.lg(f"ds_write_b128 v{TMP+1}, {vr(VF+4*q,4)} offset:{off}")
            last = p.lg(f"ds_write_b32 v{TMP+3}, v{TMP} offset:1024")
            barrier_hooks.append(("pre", last))
            barrier_hooks.append(("post", kv_reduce))
        out.append((40, wr))
        return out
    def kv_reduce():
        k0, k1 = pend["kvp"]
        p(f"s_and_b32 s{sT1}, s3, 1")
        p(f"s_lshl_b32 s{sT1}, s{sT1}, 10")
        p(f"s_add_u32 s{sT2}, s{sT1}, {pair_off(k0)}")
        p(f"s_add_u32 s{sT1}, s{sT1}, {pair_off(k1)}")
        p(f"s_cmp_ge_u32 s3, 2")
        p(f"s_cselect_b32 s{sT1}, s{sT1}, s{sT2}")
        p(f"v_add_u32 v{TMP+1}, s{sT1}, v{vL16}")
        p(f"v_add_u32 v{TMP+3}, {2*SEC}, v{TMP+1}")
        ids = []
        for sec in range(4):
            a = TMP + 1 if sec < 2 else TMP + 3
            ids.append(p.lg(f"ds_read_b128 {vr(DKV+4*sec,4)}, v{a} offset:{SEC*(sec%2)}"))
        pend["kvrd"] = ids[-1]
        def fin():
            p.wait(lg=pend["kvrd"])
            for r in range(4):
                p(f"v_add_f32 v{DKV+r}, v{DKV+r}, v{DKV+4+r}")
                p(f"v_add_f32 v{DKV+8+r}, v{DKV+8+r}, v{DKV+12+r}")
            for r in range(4):
                p(f"v_add_f32 v{DKV+r}, v{DKV+r}, v{DKV+8+r}")
            p(f"s_lshl_b32 s{sT1}, s3, 10")
            p(f"s_add_u32 s{sT1}, s{sT1}, s{sKv}")
            for r in range(4):
                o = f" offset:{256*r}" if r else ""
                pend["at"] = p.vm(f"buffer_atomic_add_f32 v{DKV+r}, v{TMP+2}, {sr(S_WS)}, s{sT1} offen{o}")
            L = p.label("z")
            p("s_cmp_eq_u32 s3, 3")
            p(f"s_cbranch_scc0 {L}")
            p(f"v_add_u32 v{TMP+3}, {2*SEC}, v{TMP+2}")
            for sec in range(4):
                a = TMP + 2 if sec < 2 else TMP + 3
                p(f"ds_read_b32 v{DKV+16+sec}, v{a} offset:{1024+SEC*(sec%2)}")
            p("s_waitcnt lgkmcnt(0)")
            p(f"v_add_f32 v{DKV+16}, v{DKV+16}, v{DKV+17}")
            p(f"v_add_f32 v{DKV+18}, v{DKV+18}, v{DKV+19}")
            p(f"s_add_u32 s{sT1}, s{sKv}, 4096")
            p(f"v_add_f32 v{DKV+16}, v{DKV+16}, v{DKV+18}")
            p(f"buffer_atomic_add_f32 v{DKV+16}, v{TMP+2}, {sr(S_WS)}, s{sT1} offen")
            p(f"{L}:")
            pend["at_ks"] = cur["ks"]
            def rel(): p.release(k0, k1)
            barrier_hooks.append(("post", rel))
        fill.insert(0, (60, fin))
        fill.insert(0, (24, "s_nop 0"))

    cur = dict(ks=0)
    issue_next(); issue_next()
    reads(0); reads(1)
    credit = 0.0
    nissue = 6
    for ks in range(NK):
        cur["ks"] = ks
        ps, kk = divmod(ks, 32); c, s = divmod(kk, 4)
        acc = ACC0 if ps != 1 else ACC1
        if kk == 0: p.stamp(f"pass{ps}")
        if ks == 34:
            fill.extend(gate_ops(typ, TMP + 8))
            if typ == "H": fill.extend(silu_fill(ACC0, 0))
            else:
                fill.extend(phi_ops(ACC0, TMP, PK)); fill.extend(phi_ops(ACC0 + 16, TMP, PK + 8))
        if ks == 66:
            if typ == "H":
                fill.extend(silu_fill(ACC1, 1))
            else:
                fill.extend(kv_sequence())
        if ks == cfg["nonce_issue"]: pend["non"] = nonce_issue(p)
        if ks == cfg["nonce_check"]: nonce_check(p, pend["non"])
        p.wait(lg=rd[ks])
        for cc in list(xrd_last):
            if xrd_last[cc] < p.lg_done:
                p.release(xs[cc]["pair"], xs[cc]["pair"] + 1); del xrd_last[cc]
        if ks + D < NK: reads(ks + D)
        xa = ar(4 * kk, 4)
        cfirst = (kk == 0)
        gaps = []
        for t in range(2):
            wf = vr(ring(ks) + 4 * t, 4)
            d = acc + 16 * t
            cop = "0" if cfirst else vr(d, 16)
            if typ == "Q" and ps < 2: gaps.append(mfma(d, xa, wf, cop))
            else: gaps.append(mfma(d, wf, xa, cop))
        if ps == 0:
            gaps.append(mfma(GACC, vr(gring(ks), 4), xa, "0" if cfirst else vr(GACC, 16)))
        if ps == 0 and s == 2 and c < 7: nissue += 6
        for gi, m in enumerate(gaps):
            p(m)
            if ps == 0:
                if nissue > 0:
                    nissue -= issue_next()
            else:
                budget = cfg["gap0"] if gi == 0 else cfg["gap1"]
                if gi == 0:
                    rate = cfg["rate"][typ][ps]
                    credit += rate
                    if credit >= 1.0:
                        res = 2 if (typ == "Q" and "kvp" not in pend and ks >= 56) else 0
                        if issue_next(res): budget -= 12
                        credit -= 1.0
                run_fill(budget)
        if typ == "H" and ks == cfg["flagS1"]:
            p.wait(vm=pend["s1"]); flag_store(p, sFlag, 1, GRING)
        if ks == 63:
            run_fill(10**6)
            if typ == "H": pend["s1"] = pend["st"]
        if typ == "Q" and "at_ks" in pend and ks == pend["at_ks"] + cfg["kvflag_delay"]:
            p.wait(vm=pend["at"])
            p(f"s_lshl2_add_u32 s{sT2}, s{sI}, s3")
            p(f"s_lshl3_add_u32 s{sT2}, s{sT2}, s{sFK}")
            flag_store(p, sT2, 1, GRING)
            pend["kvflagged"] = True
    run_fill(10**6)
    assert not barrier_hooks or all(h[0] == "post" for h in barrier_hooks), barrier_hooks
    p.stamp("p1end")
    if typ == "H": pend["s2"] = pend["st"]
    else: assert pend.get("kvflagged")
    p("s_nop 7"); p("s_nop 3")
    if typ == "H": ep = silu_fill(ACC0, 2)
    else: ep = phi_ops(ACC0, TMP, PK) + phi_ops(ACC0 + 16, TMP, PK + 8)
    moved = {}
    mv_pending = []
    def move(u):
        p.wait(vm=pu[u]["last"])
        while p.lg_n - p.lg_done > 11: p.wait(lg=p.lg_done)
        k = pu[u]["pair"]
        last = None
        for t in range(2):
            for h in range(2):
                last = p.lg(f"ds_read_b64_tr_b16 {ar(8*u+4*t+2*h,2)}, v{vPr+t} offset:{pair_off(k)+1024*h}")
        moved[u] = last
        mv_pending.append(u)
    def reap():
        for u in list(mv_pending):
            if moved[u] < p.lg_done:
                p.release(pu[u]["pair"]); mv_pending.remove(u)
    fill.extend(ep)
    nmv = 0
    p("s_barrier")
    p.release(ws[22]["pair"], ws[23]["pair"])
    for h in list(barrier_hooks):
        barrier_hooks.remove(h); h[1]()
    step = 0
    while fill:
        run_fill(cfg["ep3_chunk"])
        step += 1
        if mv_pending:
            p.wait(lg=moved[mv_pending[-1]]); reap()
        issue_next()
        for _ in range(2):
            if nmv in pu and nmv <= max(pu) - cfg["mv_lag"]:
                move(nmv); nmv += 1
    p.stamp("ep3end")
    if typ == "H":
        pend["s3"] = pend["st"]
        p.wait(vm=pend["s2"]); flag_store(p, sFlag, 2, GRING)
    WIN = cfg["win"]
    AR = cfg["aring"]; ABASE = 192
    def areg(u, rg): return ABASE + 8 * (u % AR) + 4 * rg
    aload = {}
    def issue_a(u):
        _, _, _, ab, ac, hh = P2[u]
        if hh == 0 or True:
            if ac: p(f"s_add_u32 s{sT3}, s{ab}, {ac}"); so = sT3
            else: so = ab
        for rg in range(2):
            off = hh * 2048 + rg * 1024
            o = f" offset:{off}" if off else ""
            aload[u] = p.vm(f"buffer_load_dwordx4 {vr(areg(u,rg),4)}, v{vL16}, {sr(S_WS)}, s{so} offen{o} sc1")
    polls = {}
    def do_moves():
        nonlocal nmv
        while nmv in pu and pu[nmv]["last"] < p.vm_done:
            move(nmv); nmv += 1
    while queue:
        if len(queue) == cfg["poll1_at"]:
            polls[1] = poll_issue(p, vPoll, None, 32, vNon)
        while p.outstanding() > WIN - 2 or not p.free:
            p.make_room(WIN - 2)
            do_moves()
            if mv_pending:
                p.wait(lg=moved[mv_pending[0]]); reap()
            elif not p.free:
                p.wait(vm=pu[nmv]["last"])
        issue_next()
    if 1 not in polls: polls[1] = poll_issue(p, vPoll, None, 32, vNon)
    if typ == "Q":
        p(f"v_lshlrev_b32 v2, 3, v{vL}")
        kvpoll = poll_issue(p, 2, sFK, 0, 4)
    poll_check(p, polls[1], vPoll, None, 32, vNon, 1, 3)
    do_moves()
    if typ == "H":
        flag_store(p, sFlag, 3, GRING)
    p.stamp("poll1")
    na = 0
    need_poll = {8: (2, 32), 16: (3, 32), 22: (1, 0)}
    def try_issue_a(u_cur):
        nonlocal na
        while na < NU and na < u_cur + AR and p.outstanding() <= WIN - 2:
            if na in need_poll:
                stg, imm = need_poll[na]
                poll_check(p, polls[("n", na)], vPoll, None, imm, vNon, stg, 3)
            issue_a(na); na += 1
            for tgt, (stg, imm) in need_poll.items():
                if na == tgt - cfg["poll_lead"]:
                    polls[("n", tgt)] = poll_issue(p, vPoll, None, imm, vNon)
    def o_compute_load():
        poll_check(p, kvpoll, 2, sFK, 0, 4, 1, 3)
        p.stamp("kvok")
        p(f"v_lshrrev_b32 v2, 2, v{vL16}")
        p(f"v_lshrrev_b32 v3, 5, v{vL}")
        p(f"v_lshlrev_b32 v3, 4, v3")
        p(f"s_add_u32 s{sT1}, s{sKv}, 4096")
        for r in range(16):
            o = f" offset:{256*r}" if r else ""
            p.vm(f"buffer_load_dword v{32+r}, v2, {sr(S_WS)}, s{sKv} offen{o} sc1", 0.1)
        for hd in range(4):
            for q in range(2):
                off = hd * 64 + q * 32
                o = f" offset:{off}" if off else ""
                pend["kvl"] = p.vm(f"buffer_load_dwordx4 {vr(128+8*hd+4*q,4)}, v3, {sr(S_WS)}, s{sT1} offen{o} sc1", 0.1)
    def o_compute():
        p.wait(vm=pend["kvl"])
        for t in range(2):
            for j in range(4):
                p(f"v_cvt_pk_bf16_f32 v{48+4*t+j}, v{32+8*t+2*j}, v{32+8*t+2*j+1}")
        for hd in range(4):
            for j in range(4):
                p(f"v_cvt_pk_bf16_f32 v{VF+4*hd+j}, v{128+8*hd+2*j}, v{128+8*hd+2*j+1}")
        for hd in range(4):
            t, hh = divmod(hd, 2)
            for j in range(4):
                if hh == 0: p(f"v_cndmask_b32 v{VF+4*hd+j}, v{48+4*t+j}, v{VF+4*hd+j}, {sr(sMask,2)}")
                else:       p(f"v_cndmask_b32 v{VF+4*hd+j}, v{VF+4*hd+j}, v{48+4*t+j}, {sr(sMask,2)}")
        p("s_nop 1")
        Dd = [128, 144, 32, 128]
        def o_m(hd): p(mfma(Dd[hd], vr(VF+4*hd,4), vr(PK+4*hd,4), "0"))
        def o_fin(hd):
            hh = hd % 2
            d = Dd[hd]; num = d + 8 * hh; den = d + 8 * (1 - hh)
            p(f"v_add_f32 v{den}, 0x{EPS:x}, v{den}")
            p(f"v_rcp_f32 v{den}, v{den}")
            p("s_nop 0")
            p(f"v_mul_f32 v{den}, v{den}, v{vGs}")
            for j in range(8):
                p(f"v_mul_f32 v{num+j}, v{num+j}, v{den}")
            o = 48 + 4 * hd
            for j in range(4):
                p(f"v_cvt_pk_bf16_f32 v{o+j}, v{num+2*j}, v{num+2*j+1}")
            if hd >= 2:
                p(f"s_add_u32 s{sT2}, s{sSt}, 4096"); so = sT2
            else: so = sSt
            off = f" offset:2048" if hd % 2 else ""
            pend["ost"] = p.vm(f"buffer_store_dwordx4 {vr(o,4)}, v{vL16}, {sr(S_WS)}, s{so} offen{off} sc1")
        o_m(0); o_m(1); o_m(2)
        p("s_nop 9")
        o_fin(0)
        o_m(3)
        o_fin(1); o_fin(2); o_fin(3)
        p.stamp("odone")
    while na < AR:
        p.make_room(WIN - 2)
        do_moves()
        try_issue_a(0)
    for u in range(NU):
        if typ == "Q" and u == cfg["kv_at"]: o_compute_load()
        if typ == "Q" and u == cfg["o_at"]: o_compute()
        if typ == "Q" and u == cfg["oflag_at"]:
            p.wait(vm=pend["ost"]); flag_store(p, sFlag, 1, 4)
        while nmv <= u: move(nmv); nmv += 1
        if na <= u:
            p.make_room(WIN - 2)
            try_issue_a(u)
        p.wait(vm=aload[u], lg=moved[u])
        do_moves()
        first = True
        for rg in range(2):
            for t in range(2):
                d = ACC0 + 16 * (2 * t + rg)
                p(mfma(d, ar(8*u+4*t,4), vr(areg(u,rg),4), "0" if u == 0 else vr(d,16)))
                if first:
                    try_issue_a(u if u else 0); first = False
        try_issue_a(u + 1)
    p.stamp("p2end")
    RS = 272; WA = 64 * RS
    p("s_barrier")
    p(f"v_and_b32 v2, 31, v{vL}")
    p(f"v_lshrrev_b32 v3, 5, v{vL}")
    p(f"v_mul_u32_u24 v2, {RS}, v2")
    p(f"v_lshl_add_u32 v2, v3, 4, v2")
    p(f"s_mul_i32 s{sT1}, s3, {WA}")
    p(f"v_add_u32 v2, s{sT1}, v2")
    p(f"v_lshrrev_b32 v3, 3, v{vL}")
    p(f"v_and_b32 v4, 7, v{vL}")
    p(f"v_lshlrev_b32 v5, 10, v3")
    p(f"v_lshl_add_u32 v5, v4, 4, v5")
    p(f"v_mul_u32_u24 v3, {RS}, v3")
    p(f"v_lshl_add_u32 v3, v4, 5, v3")
    p(f"s_mul_i32 s{sT1}, s3, {16*RS}")
    p(f"v_add_u32 v3, s{sT1}, v3")
    p("s_nop 3")
    for t in range(2):
        for rg in range(2):
            d = ACC0 + 16 * (2 * t + rg)
            for a in range(4):
                while p.lg_n - p.lg_done > 13: p.wait(lg=p.lg_done)
                p.lg(f"ds_write_b128 v2, {vr(d+4*a,4)} offset:{rg*32*RS + t*128 + a*32}")
    p.wait(lg=p.lg_n - 1)
    p("s_barrier")
    for it in range(2):
        ids = []
        for w in range(4):
            for q in range(2):
                ids.append(p.lg(f"ds_read_b128 {vr(128+32*it+8*w+4*q,4)}, v3 offset:{w*WA + it*8*RS + q*16}"))
        if it == 0: ids0 = ids; p.wait(lg=ids[0])
        else: ids1 = ids
    for it, ids in ((0, ids0), (1, ids1)):
        b = 128 + 32 * it
        p.wait(lg=ids[-1])
        for j in range(0, 8, 2):
            p(f"v_pk_add_f32 {vr(b+j,2)}, {vr(b+j,2)}, {vr(b+8+j,2)}")
            p(f"v_pk_add_f32 {vr(b+16+j,2)}, {vr(b+16+j,2)}, {vr(b+24+j,2)}")
        for j in range(0, 8, 2):
            p(f"v_pk_add_f32 {vr(b+j,2)}, {vr(b+j,2)}, {vr(b+16+j,2)}")
        for j in range(4):
            p(f"v_cvt_pk_bf16_f32 v{b+j}, v{b+2*j}, v{b+2*j+1}")
        if it: p(f"s_add_u32 s{sOutOff}, s{sOutOff}, 8192")
        p.vm(f"buffer_store_dwordx4 {vr(b,4)}, v5, {sr(S_OUT)}, s{sOutOff} offen")
    if p.stamps:
        p("s_waitcnt vmcnt(0)")
        p.stamp("end")
        p("s_memrealtime s[68:69]")
        p("s_waitcnt lgkmcnt(0)")
        p(f"s_lshl2_add_u32 s53, s2, s3")
        p(f"s_lshl_b32 s53, s53, 7")
        p(f"s_add_u32 s53, s53, {WS_STAMP}")
        p("s_mov_b64 exec, 1")
        p("v_mov_b32 v2, 0")
        for i in range(p.nstamp):
            p(f"v_mov_b32 v3, s{STAMP0+2*i}")
            p(f"buffer_store_dword v3, v2, {sr(S_WS)}, s53 offen offset:{4*i}")
        p(f"v_mov_b32 v3, s68")
        p(f"buffer_store_dword v3, v2, {sr(S_WS)}, s53 offen offset:64")
        p(f"v_mov_b32 v3, s{sSpin}")
        p(f"buffer_store_dword v3, v2, {sr(S_WS)}, s53 offen offset:68")
    p("s_endpgm")

DEFAULT = dict(gap0=20, gap1=8, rate={"H": [0, 0.375, 0.375], "Q": [0, 0.375, 0.375]},
               nonce_issue=40, nonce_check=56, flagS1=84, kvflag_delay=10,
               ep3_chunk=160, mv_lag=5, win=14, aring=7, poll1_at=5, poll_lead=5,
               kv_at=1, o_at=4, oflag_at=10)

def generate(cfg=None, stamps=False):
    c = dict(DEFAULT); c.update(cfg or {})
    p = Prog(stamps)
    st = prologue(p, c)
    head = p.lines
    outs = []
    names = {}
    for typ in ("Q", "H"):
        q = copy.deepcopy(p); q.lines = []; q.prefix = typ
        path(q, typ, copy.deepcopy(st), c)
        outs.append(q.lines); names[typ] = q.stamp_names
    body = head + outs[0] + ["L_pathH:"] + outs[1] + ["L_end:", "s_endpgm", "L_code_end:"]
    txt = "\n".join(("    " + l) if not l.endswith(":") else l for l in body)
    hdr = open("cdna_kernels/" + NAME + ".s.ref").read().split("; Override")[0]
    return f"""{hdr}; @launch grid=(256,1,1) block=(256,1,1) lds=163840
.amdgcn_target "amdgcn-amd-amdhsa--gfx950"
.text
.globl {NAME}_kernel
.p2align 8
.type {NAME}_kernel,@function
{NAME}_kernel:
{txt}
.section .rodata,"a"
.p2align 6
.amdhsa_kernel {NAME}_kernel
  .amdhsa_next_free_vgpr 512
  .amdhsa_next_free_sgpr 102
  .amdhsa_accum_offset 256
  .amdhsa_group_segment_fixed_size 0
  .amdhsa_kernarg_size 80
  .amdhsa_user_sgpr_count 2
  .amdhsa_user_sgpr_kernarg_segment_ptr 1
  .amdhsa_system_sgpr_workgroup_id_x 1
.end_amdhsa_kernel
""", names

if __name__ == "__main__":
    s, n = generate()
    open("k.s", "w").write(s)
    s, n = generate(stamps=True)
    open("k_st.s", "w").write(s)
    import json; json.dump(n, open("k_st.json", "w"))
    print(n)
```

```python
import sys, copy
from asmlib import NAME

KS_TOT = 118
WS_A = 0
WS_DUMP = 32 * KS_TOT * 2048
WS_KV = 0x780000
KV_STRIDE = 4352
WS_FA = 0x790000
WS_FK = 0x798000
WS_STAMP = 0x800000
WS_SIZE = 0x900000
HUGE = 0x40000000

SEC = 40960
def pair_off(k): return 2048 + 2048 * k
NPAIR = 19

S_X, S_W, S_W2, S_WO, S_WS, S_OUT, S_DBG, S_GATE = 4, 8, 12, 16, 20, 24, 28, 32
sSec, sX, sW0, sStr64 = 36, 37, 38, 39
sE, sO, sV, sWo = 40, 41, 42, 43
sAE, sAO, sAV, sAo = 44, 45, 46, 47
sSt, sSt5, sFlag, sNlo, sNhi = 48, 49, 50, 51, 52
sT0, sT1, sT2, sT3 = 53, 54, 55, 56
sI, sGrp, sRb2, sCb, sType = 57, 58, 59, 60, 61
sKv, sSpin = 62, 63
sMask = 64
sMaskG = 66
sTp = 68
sOutOff = 70
sFK = 71
STAMP0 = 72

vL = 1
vOffX = 2; vOffW = 6; vOffW3 = 8; vOffP = 10; vXr = 12; vG = 16; vWr = 17; vPr = 25; vL16 = 27
vGs = 28; vPoll = 29; vNon = 30
RING = 32; ACC0 = 64; ACC1 = 96; GACC = 128; GRING = 144
PK = 160; VF = 176; DKV = 192; TMP = 240

LOG2E = 0x3fb8aa3b
NLOG2E = 0xbfb8aa3b
EPS = 0x358637bd

class Prog:
    def __init__(self, stamps=False):
        self.lines = []
        self.vm_n = 0; self.vm_done = 0; self.vm_w = []
        self.lg_n = 0; self.lg_done = 0
        self.free = list(range(NPAIR))
        self.nlab = 0
        self.stamps = stamps
        self.nstamp = 0
        self.stamp_names = []
        self.prefix = "C"
    def __call__(self, s):
        for l in s.split("\n"):
            l = l.strip()
            if l: self.lines.append(l)
    def label(self, base):
        self.nlab += 1
        return f"{self.prefix}_{base}_{self.nlab}"
    def vm(self, s, w=1.0):
        self(s); self.vm_n += 1; self.vm_w.append(w); return self.vm_n - 1
    def lg(self, s):
        self(s); self.lg_n += 1
        assert self.lg_n - self.lg_done <= 15, "lgkm overflow"
        return self.lg_n - 1
    def wait(self, vm=None, lg=None):
        parts = []
        if vm is not None and vm >= self.vm_done:
            n = self.vm_n - vm - 1
            assert n <= 63
            parts.append(f"vmcnt({n})"); self.vm_done = vm + 1
        if lg is not None and lg >= self.lg_done:
            n = self.lg_n - lg - 1
            assert n <= 15
            parts.append(f"lgkmcnt({n})"); self.lg_done = lg + 1
        if parts:
            self("s_waitcnt " + " ".join(parts)); return True
        return False
    def outstanding(self): return sum(self.vm_w[self.vm_done:])
    def make_room(self, lim):
        k = self.vm_done
        while sum(self.vm_w[k:]) > lim: k += 1
        if k > self.vm_done: self.wait(vm=k - 1)
    def alloc_pair(self):
        k = self.free.pop(0); return k
    def alloc_x(self):
        for k in self.free:
            if k + 1 in self.free:
                self.free.remove(k); self.free.remove(k + 1); return k
        raise RuntimeError("no x slot")
    def can_x(self):
        return any(k + 1 in self.free for k in self.free)
    def release(self, *ks):
        for k in ks:
            assert k not in self.free
            self.free.append(k)
        self.free.sort()
    def stamp(self, name, rt=False):
        if not self.stamps: return
        assert self.nstamp < 15
        r = STAMP0 + 2 * self.nstamp
        self(f"s_mem{'real' if rt else ''}time s[{r}:{r+1}]")
        self.nstamp += 1; self.stamp_names.append(name)

def srd(p, d, base, nbytes):
    p(f"s_mov_b32 s{d}, s{base}")
    p(f"s_and_b32 s{d+1}, s{base+1}, 0xffff")
    p(f"s_mov_b32 s{d+2}, {nbytes}")
    p(f"s_mov_b32 s{d+3}, 0x00020000")

def vr(b, n): return f"v[{b}:{b+n-1}]"
def ar(b, n): return f"a[{b}:{b+n-1}]"
def sr(b, n=4): return f"s[{b}:{b+n-1}]"

def issue_x(p, c):
    k = p.alloc_x()
    p(f"s_add_u32 m0, s{sSec}, {pair_off(k)}")
    if c == 0:
        so = sX
        p("s_nop 0")
    else:
        p(f"s_add_u32 s{sT0}, s{sX}, {128*c}"); so = sT0
    last = None
    for b in range(4):
        off = f" offset:{1024*b}" if b else ""
        last = p.vm(f"buffer_load_dwordx4 v{vOffX+b}, {sr(S_X)}, s{so} offen{off} lds")
    return dict(pair=k, last=last)

def issue_pair(p, srdn, voff, so_expr):
    k = p.alloc_pair()
    p(f"s_add_u32 m0, s{sSec}, {pair_off(k)}")
    base, const = so_expr
    if const == 0:
        so = base; p("s_nop 0")
    elif isinstance(const, str):
        p(f"s_add_u32 s{sT0}, s{base}, {const}"); so = sT0
    else:
        p(f"s_add_u32 s{sT0}, s{base}, {const & 0xffffffff}"); so = sT0
    p.vm(f"buffer_load_dwordx4 v{voff}, {sr(srdn)}, s{so} offen lds")
    last = p.vm(f"buffer_load_dwordx4 v{voff+1}, {sr(srdn)}, s{so} offen offset:1024 lds")
    return dict(pair=k, last=last)

def wunit_expr(typ, ps, c):
    if typ == "Q":
        d = [0, 1024, -1024][ps]
        return (sW0, 64 * c * 3072 + d)
    return (sW0, 64 * c * 2752 + 128 * ps)

def p2_table():
    t = []
    def tile(wb, ab, j):
        for hh in range(2):
            t.append((S_W2, wb, j * 32768 + hh * 16384, ab, j * 4096, hh))
    tile(sE, sAE, 0); tile(sE, sAE, 1); tile(sO, sAO, 0); tile(sO, sAO, 1)
    tile(sE, sAE, 2); tile(sE, sAE, 3); tile(sO, sAO, 2); tile(sO, sAO, 3)
    tile(sE, sAE, 4); tile(sO, sAO, 4); tile(sV, sAV, 0)
    for j in range(4):
        for hh in range(2):
            t.append((S_WO, sWo, j * 32768 + hh * 16384, sAo, j * 4096, hh))
    return t
P2 = p2_table()
NU = len(P2)

def interleave(chains, width):
    out = []
    for i in range(0, len(chains), width):
        grp = chains[i:i + width]
        n = max(len(c) for c in grp)
        for j in range(n):
            for c in grp:
                if j < len(c): out.append(c[j])
    return out

def silu_ops(acc, tmp, dst):
    ops = []
    for h in range(2):
        chains = []
        for j in range(8):
            x = acc + 8 * h + j; t = tmp + j
            chains.append([(4, f"v_mul_f32 v{t}, 0x{NLOG2E:x}, v{x}"),
                           (8, f"v_exp_f32 v{t}, v{t}"),
                           (4, f"v_fma_f32 v{t}, v{t}, v{vGs}, v{vGs}"),
                           (8, f"v_rcp_f32 v{t}, v{t}"),
                           (4, f"v_mul_f32 v{t}, v{x}, v{t}")])
        ops += interleave(chains, 4)
        for j in range(4):
            ops.append((4, f"v_cvt_pk_bf16_f32 v{dst+4*h+j}, v{tmp+2*j}, v{tmp+2*j+1}"))
        ops.append((0, ("frag", h)))
    return ops

def phi_ops(acc, tmp, dst):
    ops = []
    for h in range(2):
        chains = []
        for j in range(8):
            x = acc + 8 * h + j; t = tmp + j
            chains.append([(4, f"v_mul_f32 v{t}, 0x{LOG2E:x}, v{x}"),
                           (8, f"v_exp_f32_e64 v{t}, v{t} clamp"),
                           (4, f"v_max_f32 v{x}, 0, v{x}"),
                           (4, f"v_add_f32 v{t}, v{t}, v{x}"),
                           (4, f"v_add_f32 v{t}, 0x{EPS:x}, v{t}")])
        ops += interleave(chains, 4)
        for j in range(4):
            ops.append((4, f"v_cvt_pk_bf16_f32 v{dst+4*h+j}, v{tmp+2*j}, v{tmp+2*j+1}"))
    return ops

def gate_ops(typ, t):
    o = [(4, f"v_cvt_pk_bf16_f32 v{t}, v{GACC}, v{GACC}"),
         (4, f"v_and_b32 v{t}, 0xffff0000, v{t}"),
         (4, f"v_mul_f32 v{t}, 0x{NLOG2E:x}, v{t}"),
         (8, f"v_exp_f32 v{t}, v{t}"),
         (4, "s_nop 0"),
         (4, f"v_add_f32 v{t}, 1.0, v{t}"),
         (8, f"v_rcp_f32 v{t}, v{t}"),
         (4, "s_nop 0"),
         (4, f"v_cvt_pk_bf16_f32 v{t}, v{t}, v{t}")]
    if typ == "Q":
        o.append((4, f"v_and_b32 v{vGs}, 0xffff0000, v{t}"))
    else:
        o += [(4, f"v_and_b32 v{t}, 0xffff0000, v{t}"),
              (4, f"v_sub_f32 v{t}, 1.0, v{t}"),
              (4, f"v_cvt_pk_bf16_f32 v{t}, v{t}, v{t}"),
              (4, f"v_and_b32 v{t}, 0xffff0000, v{t}"),
              (4, f"v_max_f32 v{t}, 0x0da24260, v{t}"),
              (8, f"v_rcp_f32 v{vGs}, v{t}"),
              (4, "s_nop 0")]
    return o

def spin_fail(p, lab_retry):
    p(f"s_add_u32 s{sSpin}, s{sSpin}, 1")
    p(f"s_cmp_lt_u32 s{sSpin}, 0x40000")
    p(f"s_cbranch_scc0 L_end")
    p("s_sleep 1")

def poll_issue(p, voff, soff, imm, dst):
    so = f"s{soff}" if soff is not None else "0"
    o = f" offset:{imm}" if imm else ""
    return p.vm(f"buffer_load_dwordx2 {vr(dst,2)}, v{voff}, {sr(S_WS)}, {so} offen{o} sc1", 0)

def poll_check(p, idx, voff, soff, imm, dst, stage, tmp):
    p.wait(vm=idx)
    Lc = p.label("pc"); Lok = p.label("pok")
    p(f"{Lc}:")
    p(f"s_add_u32 s{sT1}, s{sNlo}, {stage}")
    p(f"v_subrev_u32 v{tmp}, s{sT1}, v{dst}")
    p(f"v_cmp_eq_u32 {sr(sTp,2)}, s{sNhi}, v{dst+1}")
    p(f"v_cmp_ge_u32 vcc, {3-stage}, v{tmp}")
    p("s_nop 1")
    p(f"s_and_b64 vcc, vcc, {sr(sTp,2)}")
    p("s_cmp_eq_u64 vcc, -1")
    p(f"s_cbranch_scc1 {Lok}")
    spin_fail(p, Lc)
    so = f"s{soff}" if soff is not None else "0"
    o = f" offset:{imm}" if imm else ""
    p(f"buffer_load_dwordx2 {vr(dst,2)}, v{voff}, {sr(S_WS)}, {so} offen{o} sc1")
    p("s_waitcnt vmcnt(0)")
    p(f"s_branch {Lc}")
    p(f"{Lok}:")

def nonce_issue(p):
    p(f"v_mov_b32 v{vNon}, 0")
    return p.vm(f"buffer_load_dwordx2 {vr(vNon,2)}, v{vNon}, {sr(S_DBG)}, 0 offen sc1", 0)

def nonce_check(p, idx):
    p.wait(vm=idx)
    Lc = p.label("nc"); Lok = p.label("nok")
    p(f"{Lc}:")
    p(f"v_readfirstlane_b32 s{sNlo}, v{vNon}")
    p(f"v_readfirstlane_b32 s{sNhi}, v{vNon+1}")
    p("s_nop 1")
    p(f"s_cmp_lg_u32 s{sNhi}, 0")
    p(f"s_cbranch_scc1 {Lok}")
    spin_fail(p, Lc)
    p(f"v_mov_b32 v{vNon}, 0")
    p(f"buffer_load_dwordx2 {vr(vNon,2)}, v{vNon}, {sr(S_DBG)}, 0 offen sc1")
    p("s_waitcnt vmcnt(0)")
    p(f"s_branch {Lc}")
    p(f"{Lok}:")

def flag_store(p, soff, stage, tmp):
    p(f"s_add_u32 s{sT1}, s{sNlo}, {stage}")
    p(f"v_mov_b32 v{tmp}, s{sT1}")
    p(f"v_mov_b32 v{tmp+1}, s{sNhi}")
    p(f"v_mov_b32 v{tmp+2}, 0")
    p("s_mov_b64 exec, 1")
    i = p.vm(f"buffer_store_dwordx2 {vr(tmp,2)}, v{tmp+2}, {sr(S_WS)}, s{soff} offen sc1", 0)
    p("s_mov_b64 exec, -1")
    return i

def prologue(p, cfg):
    p("s_cmp_ge_u32 s2, 256")
    p("s_cbranch_scc1 L_end")
    p.stamp("start")
    p.stamp("rt0", True)
    p("s_load_dwordx4 s[84:87], s[0:1], 0")
    p("s_load_dwordx4 s[88:91], s[0:1], 32")
    p("s_load_dwordx8 s[92:99], s[0:1], 48")
    p("s_load_dwordx2 s[100:101], s[0:1], 16")
    p("s_getpc_b64 s[68:69]")
    p("L_pc:")
    p(f"v_lshrrev_b32 v2, 6, v0")
    p(f"v_and_b32 v{vL}, 63, v0")
    p("s_lshr_b32 s53, s2, 3")
    p("v_readfirstlane_b32 s3, v2")
    p("s_lshl_b32 s54, s53, 11")
    p("v_lshlrev_b32 v3, 3, v0")
    p("v_add_u32 v3, s54, v3")
    p("v_min_u32 v3, L_code_end-L_pc-8, v3")
    p.vm(f"global_load_dwordx2 v[254:255], v3, s[68:69]")
    p("s_and_b32 s54, s2, 7")
    p("s_and_b32 s55, s53, 3")
    p("s_and_b32 s56, s54, 3")
    p(f"s_lshl2_add_u32 s{sI}, s56, s55")
    p(f"s_lshl2_add_u32 s{sRb2}, s54, s55")
    p(f"s_lshr_b32 s{sCb}, s53, 2")
    p(f"s_and_b32 s{sType}, s{sCb}, 1")
    p("s_lshr_b32 s54, s54, 2")
    p("s_lshr_b32 s55, s53, 3")
    p(f"s_lshl2_add_u32 s{sGrp}, s54, s55")
    p(f"s_mul_i32 s{sSec}, s3, {SEC}")
    p(f"s_lshl2_add_u32 s{sX}, s{sI}, s3")
    p(f"s_lshl_b32 s{sX}, s{sX}, 15")
    p(f"v_lshrrev_b32 v6, 3, v{vL}")
    p(f"v_and_b32 v7, 7, v{vL}")
    p(f"v_lshrrev_b32 v8, 4, v{vL}")
    p(f"v_xor_b32 v9, v7, v8")
    p(f"v_xor_b32 v10, 4, v9")
    p(f"v_lshlrev_b32 v11, 10, v6")
    p(f"v_lshl_add_u32 v{vOffX}, v9, 4, v11")
    p(f"v_lshl_add_u32 v{vOffX+1}, v10, 4, v11")
    p(f"v_add_u32 v{vOffX+2}, {14*1024}, v{vOffX}")
    p(f"v_add_u32 v{vOffX+1}, {7*1024}, v{vOffX+1}")
    p(f"v_add_u32 v{vOffX+3}, {14*1024}, v{vOffX+1}")
    p(f"v_and_b32 v8, 1, v8")
    p(f"v_lshlrev_b32 v8, 2, v8")
    p(f"v_xor_b32 v9, v7, v8")
    p(f"v_lshlrev_b32 v9, 4, v9")
    p(f"s_mul_i32 s53, s{sGrp}, 11")
    p("s_add_u32 s53, s53, 1")
    p("s_lshr_b32 s53, s53, 1")
    p("s_min_u32 s53, s53, 38")
    p("s_lshl_b32 s54, s53, 6")
    p(f"s_lshl_b32 s55, s{sGrp}, 7")
    p("s_add_u32 s55, s55, 1024")
    p("s_movk_i32 s56, 2752")
    p(f"s_cmp_eq_u32 s{sType}, 0")
    p("s_cselect_b32 s56, 3072, s56")
    p("s_cselect_b32 s54, s55, s54")
    p(f"s_lshl_b32 s{sStr64}, s56, 6")
    p(f"s_mul_i32 s{sW0}, s3, s56")
    p(f"s_lshl_b32 s{sW0}, s{sW0}, 4")
    p(f"s_add_u32 s{sW0}, s{sW0}, s54")
    p(f"v_mad_u32_u24 v{vOffW}, v6, s56, v9")
    p("s_lshl_b32 s55, s56, 3")
    p("s_sub_u32 s55, s55, 1024")
    p(f"v_add_u32 v{vOffP}, v11, v9")
    p(f"v_add_u32 v{vOffW+1}, s55, v{vOffW}")
    p(f"v_lshlrev_b32 v{vL16}, 4, v{vL}")
    p(f"s_mov_b32 s{sSt5}, s53")
    p("s_waitcnt lgkmcnt(0)")
    srd(p, S_X, 84, 2048 * 512 * 2)
    srd(p, S_GATE, 92, 1024)
    p(f"s_cmp_eq_u32 s{sType}, 0")
    p(f"s_cselect_b32 s{S_W}, s86, s88")
    p(f"s_cselect_b32 s{S_W+1}, s87, s89")
    p(f"s_and_b32 s{S_W+1}, s{S_W+1}, 0xffff")
    p(f"s_mov_b32 s{S_W+2}, {512*1376*2}")
    p(f"s_cmp_eq_u32 s{sType}, 0")
    p(f"s_cselect_b32 s{S_W+2}, {512*1536*2}, s{S_W+2}")
    p(f"s_mov_b32 s{S_W+3}, 0x00020000")
    srd(p, S_WS, 98, WS_SIZE)
    p("s_cmp_eq_u32 s2, 255")
    p("s_cbranch_scc0 L_nozero")
    p("v_mov_b32 v240, 0\nv_mov_b32 v241, 0\nv_mov_b32 v242, 0\nv_mov_b32 v243, 0")
    p(f"s_mul_i32 s53, s3, {9*1024}")
    p(f"s_add_u32 s53, s53, {WS_KV}")
    for k in range(9):
        if k % 4 == 0 and k:
            p("s_add_u32 s53, s53, 4096")
        o = f" offset:{(k%4)*1024}" if k % 4 else ""
        p(f"buffer_store_dwordx4 v[240:243], v{vL16}, {sr(S_WS)}, s53 offen{o} sc1")
    p("L_nozero:")
    st = {}
    p(f"s_mov_b32 m0, s{sSec}")
    p("s_nop 0")
    st["gate"] = p.vm(f"buffer_load_dwordx4 v{vL16}, {sr(S_GATE)}, 0 offen lds")
    st["x"] = {}; st["w"] = {}
    st["x"][0] = issue_x(p, 0)
    st["w"][0] = issue_pair(p, S_W, vOffW, (sW0, 0))
    st["x"][1] = issue_x(p, 1)
    st["w"][1] = issue_pair(p, S_W, vOffW, (sW0, f"s{sStr64}"))
    srd(p, S_W2, 90, 1376 * 512 * 2)
    srd(p, S_WO, 100, 512 * 512 * 2)
    srd(p, S_OUT, 94, 2048 * 512 * 2)
    srd(p, S_DBG, 96, 256)
    p(f"v_add_u32 v{vOffP+1}, {7*1024}, v{vOffP}")
    p(f"s_and_b32 s53, s{sGrp}, 1")
    p(f"s_cmp_ge_u32 s{sGrp}, 6")
    p("s_cselect_b32 s53, 1, s53")
    p(f"s_mul_i32 s54, s53, {HUGE >> 6}")
    p("v_and_b32 v8, 64, v9")
    p("v_mul_lo_u32 v9, v8, s54")
    p(f"v_add_u32 v{vOffW3}, v9, v{vOffW}")
    p(f"v_add_u32 v{vOffW3+1}, v9, v{vOffW+1}")
    p(f"v_and_b32 v31, 31, v{vL}")
    p(f"v_lshrrev_b32 v30, 5, v{vL}")
    p(f"v_lshrrev_b32 v29, 3, v31")
    p(f"v_lshlrev_b32 v29, 10, v29")
    p(f"v_and_b32 v28, 7, v31")
    p(f"v_lshl_add_u32 v29, v28, 7, v29")
    p(f"v_add_u32 v29, s{sSec}, v29")
    p(f"v_bfe_u32 v28, v31, 1, 3")
    p(f"v_xor_b32 v28, v28, v30")
    for s in range(4):
        p(f"v_xor_b32 v{vXr+s}, {2*s}, v28")
        p(f"v_lshl_add_u32 v{vXr+s}, v{vXr+s}, 4, v29")
    p(f"v_lshlrev_b32 v{vG}, 4, v30")
    p(f"v_add_u32 v{vG}, s{sSec}, v{vG}")
    p(f"v_bfe_u32 v28, v{vL}, 2, 2")
    p(f"v_lshlrev_b32 v28, 7, v28")
    p(f"v_and_b32 v29, 3, v{vL}")
    p(f"v_lshl_add_u32 v28, v29, 3, v28")
    p(f"v_bfe_u32 v29, v{vL}, 4, 1")
    p(f"v_lshl_add_u32 v28, v29, 5, v28")
    p(f"v_bfe_u32 v29, v{vL}, 3, 1")
    p(f"v_lshl_add_u32 v28, v29, 6, v28")
    p(f"v_lshl_add_u32 v{vWr}, v30, 10, v28")
    p(f"v_xor_b32 v{vWr+1}, 64, v{vWr}")
    for sec in range(1, 4):
        p(f"v_add_u32 v{vWr+2*sec}, {SEC*sec}, v{vWr}")
        p(f"v_add_u32 v{vWr+2*sec+1}, {SEC*sec}, v{vWr+1}")
    p(f"v_lshl_add_u32 v{vPr}, v30, 9, v28")
    p(f"v_xor_b32 v{vPr+1}, 64, v{vPr}")
    p(f"v_add_u32 v{vPr}, s{sSec}, v{vPr}")
    p(f"v_add_u32 v{vPr+1}, s{sSec}, v{vPr+1}")
    p(f"v_and_b32 v{vPoll}, 3, v{vL}")
    p(f"v_lshlrev_b32 v{vPoll}, 3, v{vPoll}")
    p(f"s_lshl2_add_u32 s53, s{sRb2}, s3")
    p(f"s_lshl_b32 s53, s53, 7")
    p(f"s_add_u32 s53, s53, {WS_FA}")
    p(f"v_add_u32 v{vPoll}, s53, v{vPoll}")
    p(f"s_mov_b32 s{sMask}, 0xffff0000")
    p(f"s_mov_b32 s{sMask+1}, 0xffff0000")
    p(f"s_mov_b32 s{sMaskG}, 0")
    p(f"s_mov_b32 s{sMaskG+1}, -1")
    p(f"s_mov_b32 s{sSpin}, 0")
    p(f"s_mul_i32 s53, s3, 11")
    p(f"s_add_u32 s54, s53, 6")
    p(f"s_min_u32 s54, s54, 38")
    p(f"s_lshl_b32 s55, s{sCb}, 7")
    p(f"s_lshl_b32 s{sE}, s53, 15")
    p(f"s_add_u32 s{sE}, s{sE}, s55")
    p(f"s_lshl_b32 s{sO}, s54, 15")
    p(f"s_add_u32 s{sO}, s{sO}, s55")
    p(f"s_lshl_b32 s{sWo}, s3, 17")
    p(f"s_add_u32 s{sWo}, s{sWo}, s55")
    p(f"s_mul_i32 s55, s{sRb2}, {KS_TOT*2048}")
    p(f"s_lshl_b32 s{sAE}, s53, 12")
    p(f"s_add_u32 s{sAE}, s{sAE}, s55")
    p(f"s_lshl_b32 s{sAO}, s54, 12")
    p(f"s_add_u32 s{sAO}, s{sAO}, s55")
    p(f"s_lshl_b32 s{sAo}, s3, 14")
    p(f"s_add_u32 s{sAo}, s{sAo}, s55")
    p(f"s_add_u32 s{sAo}, s{sAo}, {86*2048}")
    p(f"s_add_u32 s{sV}, s{sE}, {5*32768}")
    p(f"s_add_u32 s{sAV}, s{sAE}, {5*4096}")
    p("s_cmp_eq_u32 s3, 3")
    p(f"s_cselect_b32 s{sV}, {HUGE}, s{sV}")
    p(f"s_cselect_b32 s{sAV}, {HUGE}, s{sAV}")
    p(f"s_lshr_b32 s53, s3, 1")
    p(f"s_lshl1_add_u32 s53, s{sI}, s53")
    p(f"s_and_b32 s54, s3, 1")
    p(f"s_mul_i32 s{sSt}, s53, {KS_TOT*2048}")
    p(f"s_lshl_b32 s55, s54, 10")
    p(f"s_add_u32 s{sSt}, s{sSt}, s55")
    p(f"s_lshl_b32 s55, s{sSt5}, 12")
    p(f"s_lshl_b32 s56, s{sGrp}, 13")
    p(f"s_add_u32 s56, s56, {86*2048}")
    p(f"s_cmp_eq_u32 s{sType}, 0")
    p(f"s_cselect_b32 s55, s56, s55")
    p(f"s_add_u32 s{sSt}, s{sSt}, s55")
    p(f"s_add_u32 s{sSt5}, s{sSt}, {5*4096}")
    p(f"s_and_b32 s55, s{sGrp}, 1")
    p(f"s_cmp_ge_u32 s{sGrp}, 6")
    p("s_cselect_b32 s55, 1, s55")
    p("s_cmp_eq_u32 s55, 1")
    p(f"s_cselect_b32 s{sSt5}, {HUGE}, s{sSt5}")
    p(f"s_lshr_b32 s55, s{sGrp}, 1")
    p(f"s_lshl2_add_u32 s53, s53, s55")
    p(f"s_lshl_b32 s53, s53, 7")
    p(f"s_and_b32 s55, s{sGrp}, 1")
    p(f"s_lshl1_add_u32 s55, s{sType}, s55")
    p(f"s_lshl1_add_u32 s55, s55, s54")
    p(f"s_lshl3_add_u32 s53, s55, s53")
    p(f"s_add_u32 s{sFlag}, s53, {WS_FA}")
    p(f"s_mul_i32 s{sKv}, s{sGrp}, {KV_STRIDE}")
    p(f"s_add_u32 s{sKv}, s{sKv}, {WS_KV}")
    p(f"s_lshl_b32 s{sFK}, s{sGrp}, 9")
    p(f"s_add_u32 s{sFK}, s{sFK}, {WS_FK}")
    p(f"s_lshl2_add_u32 s53, s{sRb2}, s3")
    p(f"s_lshl_b32 s53, s53, 14")
    p(f"s_lshl_b32 s54, s{sCb}, 7")
    p(f"s_add_u32 s{sOutOff}, s53, s54")
    p(f"s_cmp_eq_u32 s{sType}, 0")
    p("s_cbranch_scc0 L_pathH")
    return st

def mfma(d, a, b, c):
    return f"v_mfma_f32_32x32x16_bf16 {vr(d,16)}, {a}, {b}, {c}"

def path(p, typ, st, cfg):
    D = 2
    xs = dict(st["x"]); ws = dict(st["w"])
    pu = {}
    queue = []
    for c in range(2, 8):
        queue.append(("x", c)); queue.append(("w", c))
    for s in range(8, 24): queue.append(("w", s))
    for u in range(NU): queue.append(("p", u))
    def issue_next(reserve=0):
        if not queue: return 0
        kind, a = queue[0]
        if kind == "x":
            if not p.can_x(): return 0
            queue.pop(0); xs[a] = issue_x(p, a); return 4
        if len(p.free) <= reserve: return 0
        queue.pop(0)
        if kind == "w":
            ps, c = divmod(a, 8)
            voff = vOffW3 if (typ == "H" and ps == 2) else vOffW
            ws[a] = issue_pair(p, S_W, voff, wunit_expr(typ, ps, c))
        else:
            srdn, wb, wc = P2[a][:3]
            pu[a] = issue_pair(p, srdn, vOffP, (wb, wc))
        return 2

    NK = 96
    rd = {}
    xrd_last = {}
    def ring(ks): return RING + 8 * (ks % 4)
    def gring(ks): return GRING + 4 * (ks % 4)
    barrier_hooks = []
    state = dict(bar=0)
    def enter_stage(s):
        v = ws[s]["last"]
        if s < 8: v = max(v, xs[s]["last"])
        pre = [h for h in barrier_hooks if h[0] == "pre"]
        lgw = None
        for h in pre:
            lgw = h[1]; barrier_hooks.remove(h)
        p.wait(vm=v, lg=lgw)
        p("s_barrier")
        state["bar"] += 1
        if s == 0:
            L = p.label("nn")
            p("s_cmp_eq_u32 s2, 255")
            p(f"s_cbranch_scc0 {L}")
            p("s_cmp_eq_u32 s3, 0")
            p(f"s_cbranch_scc0 {L}")
            p(f"s_memrealtime s[68:69]")
            p("s_waitcnt lgkmcnt(0)")
            p("s_lshr_b32 s53, s68, 30")
            p("s_lshl2_add_u32 s53, s69, s53")
            p("s_or_b32 s53, s53, 0x80000000")
            p("s_lshl_b32 s54, s68, 2")
            p(f"v_mov_b32 v{TMP}, s54")
            p(f"v_mov_b32 v{TMP+1}, s53")
            p(f"v_mov_b32 v{TMP+2}, 0")
            p("s_mov_b64 exec, 1")
            p(f"buffer_store_dwordx2 {vr(TMP,2)}, v{TMP+2}, {sr(S_DBG)}, 0 offen sc1")
            p("s_mov_b64 exec, -1")
            p(f"{L}:")
        if s >= 2:
            p.release(ws[s - 2]["pair"])
        for h in list(barrier_hooks):
            if h[0] == "post":
                barrier_hooks.remove(h); h[1]()
    def reads(ks):
        ps, kk = divmod(ks, 32); c, s = divmod(kk, 4); stg = ps * 8 + c
        if s == 0: enter_stage(stg)
        last = None
        if ps == 0:
            k = xs[c]["pair"]
            last = p.lg(f"ds_read_b128 {ar(4*kk,4)}, v{vXr+s} offset:{pair_off(k)}")
            if s == 3: xrd_last[c] = last
            last = p.lg(f"ds_read_b128 {vr(gring(ks),4)}, v{vG} offset:{32*kk}")
        k = ws[stg]["pair"]
        for t in range(2):
            for h in range(2):
                last = p.lg(f"ds_read_b64_tr_b16 {vr(ring(ks)+4*t+2*h,2)}, v{vWr+2*s+t} offset:{pair_off(k)+512*h}")
        rd[ks] = last

    fill = []
    def run_fill(budget):
        spent = 0
        while fill and spent < budget:
            cost, item = fill.pop(0)
            if callable(item): item()
            else: p(item)
            spent += cost
        return spent

    pend = {}
    def h_store(tile_in_wg, dstregs):
        def mk(h):
            def f():
                if tile_in_wg == 5:
                    base, off = sSt5, h * 2048
                    so = base
                else:
                    if tile_in_wg == 0: so = sSt
                    else:
                        p(f"s_add_u32 s{sT2}, s{sSt}, {tile_in_wg*4096}"); so = sT2
                    off = h * 2048
                o = f" offset:{off}" if off else ""
                pend["st"] = p.vm(f"buffer_store_dwordx4 {vr(dstregs+4*h,4)}, v{vL16}, {sr(S_WS)}, s{so} offen{o} sc1")
            return f
        return mk
    def silu_fill(acc, ps):
        out = []
        for t in range(2):
            dst = PK + 8 * t + 16 * (ps % 2)
            mk = h_store(2 * ps + t, dst)
            for cost, it in silu_ops(acc + 16 * t, TMP, dst):
                if isinstance(it, tuple): out.append((8, mk(it[1])))
                else: out.append((cost, it))
        return out

    def kv_sequence():
        out = []
        for t in range(2):
            for j in range(8):
                out.append((4, f"v_cvt_pk_bf16_f32 v{VF+8*t+j}, v{ACC1+16*t+2*j}, v{ACC1+16*t+2*j+1}"))
        out.append((4, f"v_mov_b32 v{TMP+8}, 0x3f803f80"))
        out.append((4, f"v_cndmask_b32 v{TMP}, v{TMP+8}, 0, {sr(sMask,2)}"))
        out.append((4, f"v_cndmask_b32 v{TMP+4}, 0, v{TMP+8}, {sr(sMask,2)}"))
        for j in range(1, 4):
            out.append((4, f"v_mov_b32 v{TMP+j}, v{TMP}"))
            out.append((4, f"v_mov_b32 v{TMP+4+j}, v{TMP+4}"))
        out.append((8, "s_nop 1"))
        for t in range(2):
            for h in range(2):
                c = "0" if h == 0 else vr(DKV+16*t, 16)
                out.append((32, mfma(DKV+16*t, vr(PK+8*t+4*h,4), vr(VF+8*t+4*h,4), c)))
        for t in range(2):
            for h in range(2):
                c = "0" if (t == 0 and h == 0) else vr(DKV+32, 16)
                out.append((32, mfma(DKV+32, vr(TMP+4*t,4), vr(PK+8*t+4*h,4), c)))
        out.append((40, "s_nop 11"))
        for t in range(2):
            for r in range(8):
                out.append((4, f"v_cndmask_b32 v{VF+8*t+r}, v{DKV+16*t+r}, v{DKV+16*t+8+r}, {sr(sMask,2)}"))
        out.append((4, f"v_cndmask_b32 v{TMP}, v{DKV+32}, v{DKV+40}, {sr(sMaskG,2)}"))
        def wr():
            k0 = p.alloc_pair(); k1 = p.alloc_pair()
            pend["kvp"] = (k0, k1)
            p(f"v_add_u32 v{TMP+1}, s{sSec}, v{vL16}")
            p(f"v_lshrrev_b32 v{TMP+2}, 2, v{vL16}")
            p(f"v_add_u32 v{TMP+3}, s{sSec}, v{TMP+2}")
            for q in range(4):
                off = pair_off((k0, k1)[q // 2]) + 1024 * (q % 2)
                p.lg(f"ds_write_b128 v{TMP+1}, {vr(VF+4*q,4)} offset:{off}")
            last = p.lg(f"ds_write_b32 v{TMP+3}, v{TMP} offset:1024")
            barrier_hooks.append(("pre", last))
            barrier_hooks.append(("post", kv_reduce))
        out.append((40, wr))
        return out
    def kv_reduce():
        k0, k1 = pend["kvp"]
        p(f"s_and_b32 s{sT1}, s3, 1")
        p(f"s_lshl_b32 s{sT1}, s{sT1}, 10")
        p(f"s_add_u32 s{sT2}, s{sT1}, {pair_off(k0)}")
        p(f"s_add_u32 s{sT1}, s{sT1}, {pair_off(k1)}")
        p(f"s_cmp_ge_u32 s3, 2")
        p(f"s_cselect_b32 s{sT1}, s{sT1}, s{sT2}")
        p(f"v_add_u32 v{TMP+1}, s{sT1}, v{vL16}")
        p(f"v_add_u32 v{TMP+3}, {2*SEC}, v{TMP+1}")
        ids = []
        for sec in range(4):
            a = TMP + 1 if sec < 2 else TMP + 3
            ids.append(p.lg(f"ds_read_b128 {vr(DKV+4*sec,4)}, v{a} offset:{SEC*(sec%2)}"))
        pend["kvrd"] = ids[-1]
        def fin():
            p.wait(lg=pend["kvrd"])
            for r in range(4):
                p(f"v_add_f32 v{DKV+r}, v{DKV+r}, v{DKV+4+r}")
                p(f"v_add_f32 v{DKV+8+r}, v{DKV+8+r}, v{DKV+12+r}")
            for r in range(4):
                p(f"v_add_f32 v{DKV+r}, v{DKV+r}, v{DKV+8+r}")
            p(f"s_lshl_b32 s{sT1}, s3, 10")
            p(f"s_add_u32 s{sT1}, s{sT1}, s{sKv}")
            for r in range(4):
                o = f" offset:{256*r}" if r else ""
                pend["at"] = p.vm(f"buffer_atomic_add_f32 v{DKV+r}, v{TMP+2}, {sr(S_WS)}, s{sT1} offen{o}")
            L = p.label("z")
            p("s_cmp_eq_u32 s3, 3")
            p(f"s_cbranch_scc0 {L}")
            p(f"v_add_u32 v{TMP+3}, {2*SEC}, v{TMP+2}")
            for sec in range(4):
                a = TMP + 2 if sec < 2 else TMP + 3
                p(f"ds_read_b32 v{DKV+16+sec}, v{a} offset:{1024+SEC*(sec%2)}")
            p("s_waitcnt lgkmcnt(0)")
            p(f"v_add_f32 v{DKV+16}, v{DKV+16}, v{DKV+17}")
            p(f"v_add_f32 v{DKV+18}, v{DKV+18}, v{DKV+19}")
            p(f"s_add_u32 s{sT1}, s{sKv}, 4096")
            p(f"v_add_f32 v{DKV+16}, v{DKV+16}, v{DKV+18}")
            p(f"buffer_atomic_add_f32 v{DKV+16}, v{TMP+2}, {sr(S_WS)}, s{sT1} offen")
            p(f"{L}:")
            pend["at_ks"] = cur["ks"]
            def rel(): p.release(k0, k1)
            barrier_hooks.append(("post", rel))
        fill.insert(0, (60, fin))
        fill.insert(0, (24, "s_nop 0"))

    cur = dict(ks=0)
    issue_next(); issue_next()
    reads(0); reads(1)
    credit = 0.0
    nissue = 6
    for ks in range(NK):
        cur["ks"] = ks
        ps, kk = divmod(ks, 32); c, s = divmod(kk, 4)
        acc = ACC0 if ps != 1 else ACC1
        if kk == 0: p.stamp(f"pass{ps}")
        if ks == 34:
            fill.extend(gate_ops(typ, TMP + 8))
            if typ == "H": fill.extend(silu_fill(ACC0, 0))
            else:
                fill.extend(phi_ops(ACC0, TMP, PK)); fill.extend(phi_ops(ACC0 + 16, TMP, PK + 8))
        if ks == 66:
            if typ == "H":
                fill.extend(silu_fill(ACC1, 1))
            else:
                fill.extend(kv_sequence())
        if ks == cfg["nonce_issue"]: pend["non"] = nonce_issue(p)
        if ks == cfg["nonce_check"]: nonce_check(p, pend["non"])
        p.wait(lg=rd[ks])
        for cc in list(xrd_last):
            if xrd_last[cc] < p.lg_done:
                p.release(xs[cc]["pair"], xs[cc]["pair"] + 1); del xrd_last[cc]
        if ks + D < NK: reads(ks + D)
        xa = ar(4 * kk, 4)
        cfirst = (kk == 0)
        gaps = []
        for t in range(2):
            wf = vr(ring(ks) + 4 * t, 4)
            d = acc + 16 * t
            cop = "0" if cfirst else vr(d, 16)
            if typ == "Q" and ps < 2: gaps.append(mfma(d, xa, wf, cop))
            else: gaps.append(mfma(d, wf, xa, cop))
        if ps == 0:
            gaps.append(mfma(GACC, vr(gring(ks), 4), xa, "0" if cfirst else vr(GACC, 16)))
        if ps == 0 and s == 2 and c < 7: nissue += 6
        for gi, m in enumerate(gaps):
            p(m)
            if ps == 0:
                if nissue > 0:
                    nissue -= issue_next()
            else:
                budget = cfg["gap0"] if gi == 0 else cfg["gap1"]
                if gi == 0:
                    rate = cfg["rate"][typ][ps]
                    credit += rate
                    if credit >= 1.0:
                        res = 2 if (typ == "Q" and "kvp" not in pend and ks >= 56) else 0
                        if issue_next(res): budget -= 12
                        credit -= 1.0
                run_fill(budget)
        if typ == "H" and ks == cfg["flagS1"]:
            p.wait(vm=pend["s1"]); flag_store(p, sFlag, 1, GRING)
        if ks == 63:
            run_fill(10**6)
            if typ == "H": pend["s1"] = pend["st"]
        if typ == "Q" and "at_ks" in pend and ks == pend["at_ks"] + cfg["kvflag_delay"]:
            p.wait(vm=pend["at"])
            p(f"s_lshl2_add_u32 s{sT2}, s{sI}, s3")
            p(f"s_lshl3_add_u32 s{sT2}, s{sT2}, s{sFK}")
            flag_store(p, sT2, 1, GRING)
            pend["kvflagged"] = True
    run_fill(10**6)
    assert not barrier_hooks or all(h[0] == "post" for h in barrier_hooks), barrier_hooks
    p.stamp("p1end")
    if typ == "H": pend["s2"] = pend["st"]
    else: assert pend.get("kvflagged")
    p("s_nop 7"); p("s_nop 3")
    if typ == "H": ep = silu_fill(ACC0, 2)
    else: ep = phi_ops(ACC0, TMP, PK) + phi_ops(ACC0 + 16, TMP, PK + 8)
    moved = {}
    mv_pending = []
    def move(u):
        p.wait(vm=pu[u]["last"])
        while p.lg_n - p.lg_done > 11: p.wait(lg=p.lg_done)
        k = pu[u]["pair"]
        last = None
        for t in range(2):
            for h in range(2):
                last = p.lg(f"ds_read_b64_tr_b16 {ar(8*u+4*t+2*h,2)}, v{vPr+t} offset:{pair_off(k)+1024*h}")
        moved[u] = last
        mv_pending.append(u)
    def reap():
        for u in list(mv_pending):
            if moved[u] < p.lg_done:
                p.release(pu[u]["pair"]); mv_pending.remove(u)
    fill.extend(ep)
    nmv = 0
    p("s_barrier")
    p.release(ws[22]["pair"], ws[23]["pair"])
    for h in list(barrier_hooks):
        barrier_hooks.remove(h); h[1]()
    step = 0
    while fill:
        run_fill(cfg["ep3_chunk"])
        step += 1
        if mv_pending:
            p.wait(lg=moved[mv_pending[-1]]); reap()
        issue_next()
        for _ in range(2):
            if nmv in pu and nmv <= max(pu) - cfg["mv_lag"]:
                move(nmv); nmv += 1
    p.stamp("ep3end")
    if typ == "H":
        pend["s3"] = pend["st"]
        p.wait(vm=pend["s2"]); flag_store(p, sFlag, 2, GRING)
    WIN = cfg["win"]
    AR = cfg["aring"]; ABASE = 192
    def areg(u, rg): return ABASE + 8 * (u % AR) + 4 * rg
    aload = {}
    def issue_a(u):
        _, _, _, ab, ac, hh = P2[u]
        if hh == 0 or True:
            if ac: p(f"s_add_u32 s{sT3}, s{ab}, {ac}"); so = sT3
            else: so = ab
        for rg in range(2):
            off = hh * 2048 + rg * 1024
            o = f" offset:{off}" if off else ""
            aload[u] = p.vm(f"buffer_load_dwordx4 {vr(areg(u,rg),4)}, v{vL16}, {sr(S_WS)}, s{so} offen{o} sc1")
    polls = {}
    def do_moves():
        nonlocal nmv
        while nmv in pu and pu[nmv]["last"] < p.vm_done:
            move(nmv); nmv += 1
    while queue:
        if len(queue) == cfg["poll1_at"]:
            polls[1] = poll_issue(p, vPoll, None, 32, vNon)
        while p.outstanding() > WIN - 2 or not p.free:
            p.make_room(WIN - 2)
            do_moves()
            if mv_pending:
                p.wait(lg=moved[mv_pending[0]]); reap()
            elif not p.free:
                p.wait(vm=pu[nmv]["last"])
        issue_next()
    if 1 not in polls: polls[1] = poll_issue(p, vPoll, None, 32, vNon)
    if typ == "Q":
        p(f"v_lshlrev_b32 v2, 3, v{vL}")
        kvpoll = poll_issue(p, 2, sFK, 0, 4)
    poll_check(p, polls[1], vPoll, None, 32, vNon, 1, 3)
    do_moves()
    if typ == "H":
        flag_store(p, sFlag, 3, GRING)
    p.stamp("poll1")
    na = 0
    need_poll = {8: (2, 32), 16: (3, 32), 22: (1, 0)}
    def try_issue_a(u_cur):
        nonlocal na
        while na < NU and na < u_cur + AR and p.outstanding() <= WIN - 2:
            if na in need_poll:
                stg, imm = need_poll[na]
                poll_check(p, polls[("n", na)], vPoll, None, imm, vNon, stg, 3)
            issue_a(na); na += 1
            for tgt, (stg, imm) in need_poll.items():
                if na == tgt - cfg["poll_lead"]:
                    polls[("n", tgt)] = poll_issue(p, vPoll, None, imm, vNon)
    def o_compute_load():
        poll_check(p, kvpoll, 2, sFK, 0, 4, 1, 3)
        p.stamp("kvok")
        p(f"v_lshrrev_b32 v2, 2, v{vL16}")
        p(f"v_lshrrev_b32 v3, 5, v{vL}")
        p(f"v_lshlrev_b32 v3, 4, v3")
        p(f"s_add_u32 s{sT1}, s{sKv}, 4096")
        for r in range(16):
            o = f" offset:{256*r}" if r else ""
            p.vm(f"buffer_load_dword v{32+r}, v2, {sr(S_WS)}, s{sKv} offen{o} sc1", 0.1)
        for hd in range(4):
            for q in range(2):
                off = hd * 64 + q * 32
                o = f" offset:{off}" if off else ""
                pend["kvl"] = p.vm(f"buffer_load_dwordx4 {vr(128+8*hd+4*q,4)}, v3, {sr(S_WS)}, s{sT1} offen{o} sc1", 0.1)
    def o_compute():
        p.wait(vm=pend["kvl"])
        for t in range(2):
            for j in range(4):
                p(f"v_cvt_pk_bf16_f32 v{48+4*t+j}, v{32+8*t+2*j}, v{32+8*t+2*j+1}")
        for hd in range(4):
            for j in range(4):
                p(f"v_cvt_pk_bf16_f32 v{VF+4*hd+j}, v{128+8*hd+2*j}, v{128+8*hd+2*j+1}")
        for hd in range(4):
            t, hh = divmod(hd, 2)
            for j in range(4):
                if hh == 0: p(f"v_cndmask_b32 v{VF+4*hd+j}, v{48+4*t+j}, v{VF+4*hd+j}, {sr(sMask,2)}")
                else:       p(f"v_cndmask_b32 v{VF+4*hd+j}, v{VF+4*hd+j}, v{48+4*t+j}, {sr(sMask,2)}")
        p("s_nop 1")
        Dd = [128, 144, 32, 128]
        def o_m(hd): p(mfma(Dd[hd], vr(VF+4*hd,4), vr(PK+4*hd,4), "0"))
        def o_fin(hd):
            hh = hd % 2
            d = Dd[hd]; num = d + 8 * hh; den = d + 8 * (1 - hh)
            p(f"v_add_f32 v{den}, 0x{EPS:x}, v{den}")
            p(f"v_rcp_f32 v{den}, v{den}")
            p("s_nop 0")
            p(f"v_mul_f32 v{den}, v{den}, v{vGs}")
            for j in range(8):
                p(f"v_mul_f32 v{num+j}, v{num+j}, v{den}")
            o = 48 + 4 * hd
            for j in range(4):
                p(f"v_cvt_pk_bf16_f32 v{o+j}, v{num+2*j}, v{num+2*j+1}")
            if hd >= 2:
                p(f"s_add_u32 s{sT2}, s{sSt}, 4096"); so = sT2
            else: so = sSt
            off = f" offset:2048" if hd % 2 else ""
            pend["ost"] = p.vm(f"buffer_store_dwordx4 {vr(o,4)}, v{vL16}, {sr(S_WS)}, s{so} offen{off} sc1")
        o_m(0); o_m(1); o_m(2)
        p("s_nop 9")
        o_fin(0)
        o_m(3)
        o_fin(1); o_fin(2); o_fin(3)
        p.stamp("odone")
    while na < AR:
        p.make_room(WIN - 2)
        do_moves()
        try_issue_a(0)
    for u in range(NU):
        if typ == "Q" and u == cfg["kv_at"]: o_compute_load()
        if typ == "Q" and u == cfg["o_at"]: o_compute()
        if typ == "Q" and u == cfg["oflag_at"]:
            p.wait(vm=pend["ost"]); flag_store(p, sFlag, 1, 4)
        while nmv <= u: move(nmv); nmv += 1
        if na <= u:
            p.make_room(WIN - 2)
            try_issue_a(u)
        p.wait(vm=aload[u], lg=moved[u])
        do_moves()
        first = True
        for rg in range(2):
            for t in range(2):
                d = ACC0 + 16 * (2 * t + rg)
                p(mfma(d, ar(8*u+4*t,4), vr(areg(u,rg),4), "0" if u == 0 else vr(d,16)))
                if first:
                    try_issue_a(u if u else 0); first = False
        try_issue_a(u + 1)
    p.stamp("p2end")
    RS = 272; WA = 64 * RS
    p("s_barrier")
    p(f"v_and_b32 v2, 31, v{vL}")
    p(f"v_lshrrev_b32 v3, 5, v{vL}")
    p(f"v_mul_u32_u24 v2, {RS}, v2")
    p(f"v_lshl_add_u32 v2, v3, 4, v2")
    p(f"s_mul_i32 s{sT1}, s3, {WA}")
    p(f"v_add_u32 v2, s{sT1}, v2")
    p(f"v_lshrrev_b32 v3, 3, v{vL}")
    p(f"v_and_b32 v4, 7, v{vL}")
    p(f"v_lshlrev_b32 v5, 10, v3")
    p(f"v_lshl_add_u32 v5, v4, 4, v5")
    p(f"v_mul_u32_u24 v3, {RS}, v3")
    p(f"v_lshl_add_u32 v3, v4, 5, v3")
    p(f"s_mul_i32 s{sT1}, s3, {16*RS}")
    p(f"v_add_u32 v3, s{sT1}, v3")
    p("s_nop 3")
    for t in range(2):
        for rg in range(2):
            d = ACC0 + 16 * (2 * t + rg)
            for a in range(4):
                while p.lg_n - p.lg_done > 13: p.wait(lg=p.lg_done)
                p.lg(f"ds_write_b128 v2, {vr(d+4*a,4)} offset:{rg*32*RS + t*128 + a*32}")
    p.wait(lg=p.lg_n - 1)
    p("s_barrier")
    for it in range(2):
        ids = []
        for w in range(4):
            for q in range(2):
                ids.append(p.lg(f"ds_read_b128 {vr(128+32*it+8*w+4*q,4)}, v3 offset:{w*WA + it*8*RS + q*16}"))
        if it == 0: ids0 = ids; p.wait(lg=ids[0])
        else: ids1 = ids
    for it, ids in ((0, ids0), (1, ids1)):
        b = 128 + 32 * it
        p.wait(lg=ids[-1])
        for j in range(0, 8, 2):
            p(f"v_pk_add_f32 {vr(b+j,2)}, {vr(b+j,2)}, {vr(b+8+j,2)}")
            p(f"v_pk_add_f32 {vr(b+16+j,2)}, {vr(b+16+j,2)}, {vr(b+24+j,2)}")
        for j in range(0, 8, 2):
            p(f"v_pk_add_f32 {vr(b+j,2)}, {vr(b+j,2)}, {vr(b+16+j,2)}")
        for j in range(4):
            p(f"v_cvt_pk_bf16_f32 v{b+j}, v{b+2*j}, v{b+2*j+1}")
        if it: p(f"s_add_u32 s{sOutOff}, s{sOutOff}, 8192")
        p.vm(f"buffer_store_dwordx4 {vr(b,4)}, v5, {sr(S_OUT)}, s{sOutOff} offen")
    if p.stamps:
        p("s_waitcnt vmcnt(0)")
        p.stamp("end")
        p("s_memrealtime s[68:69]")
        p("s_waitcnt lgkmcnt(0)")
        p(f"s_lshl2_add_u32 s53, s2, s3")
        p(f"s_lshl_b32 s53, s53, 7")
        p(f"s_add_u32 s53, s53, {WS_STAMP}")
        p("s_mov_b64 exec, 1")
        p("v_mov_b32 v2, 0")
        for i in range(p.nstamp):
            p(f"v_mov_b32 v3, s{STAMP0+2*i}")
            p(f"buffer_store_dword v3, v2, {sr(S_WS)}, s53 offen offset:{4*i}")
        p(f"v_mov_b32 v3, s68")
        p(f"buffer_store_dword v3, v2, {sr(S_WS)}, s53 offen offset:64")
        p(f"v_mov_b32 v3, s{sSpin}")
        p(f"buffer_store_dword v3, v2, {sr(S_WS)}, s53 offen offset:68")
    p("s_endpgm")

DEFAULT = dict(gap0=20, gap1=8, rate={"H": [0, 0.375, 0.375], "Q": [0, 0.375, 0.375]},
               nonce_issue=40, nonce_check=56, flagS1=84, kvflag_delay=10,
               ep3_chunk=160, mv_lag=5, win=14, aring=7, poll1_at=5, poll_lead=5,
               kv_at=1, o_at=4, oflag_at=10)

def amp_kernel(K):
    p = Prog()
    p("s_cmp_ge_u32 s2, 1")
    p("s_cbranch_scc1 A_end")
    p("s_load_dwordx2 s[4:5], s[0:1], 72")
    p("s_waitcnt lgkmcnt(0)")
    srd(p, 8, 4, WS_SIZE)
    p("v_lshlrev_b32 v1, 7, v0")
    p(f"v_add_u32 v1, {WS_STAMP}, v1")
    p("v_mov_b32 v2, -1")
    p("v_mov_b32 v3, 0")
    for i in range(16):
        p(f"s_mov_b32 s12, {i*64*128}")
        p(f"buffer_load_dword v4, v1, s[8:11], s12 offen offset:4")
        p(f"buffer_load_dword v5, v1, s[8:11], s12 offen offset:64")
        p("s_waitcnt vmcnt(0)")
        p("v_min_u32 v2, v2, v4")
        p("v_max_u32 v3, v3, v5")
    p("s_mov_b32 s13, -1")
    p("s_mov_b32 s14, 0")
    p("s_nop 1")
    for l in range(64):
        p(f"v_readlane_b32 s15, v2, {l}")
        p(f"v_readlane_b32 s16, v3, {l}")
        p("s_nop 3")
        p("s_min_u32 s13, s13, s15")
        p("s_max_u32 s14, s14, s16")
    p("s_sub_u32 s14, s14, s13")
    p("s_min_u32 s14, s14, 10000")
    p(f"s_mul_i32 s14, s14, {K}")
    p("s_memrealtime s[16:17]")
    p("s_waitcnt lgkmcnt(0)")
    p("A_loop:")
    p("s_memrealtime s[18:19]")
    p("s_waitcnt lgkmcnt(0)")
    p("s_sub_u32 s20, s18, s16")
    p("s_cmp_lt_u32 s20, s14")
    p("s_cbranch_scc1 A_loop")
    p("A_end:")
    p("s_endpgm")
    return p.lines

def generate(cfg=None, stamps=False, amp=None):
    c = dict(DEFAULT); c.update(cfg or {})
    p = Prog(stamps)
    st = prologue(p, c)
    head = p.lines
    outs = []
    names = {}
    for typ in ("Q", "H"):
        q = copy.deepcopy(p); q.lines = []; q.prefix = typ
        path(q, typ, copy.deepcopy(st), c)
        outs.append(q.lines); names[typ] = q.stamp_names
    body = head + outs[0] + ["L_pathH:"] + outs[1] + ["L_end:", "s_endpgm", "L_code_end:"]
    txt = "\n".join(("    " + l) if not l.endswith(":") else l for l in body)
    hdr = open("cdna_kernels/" + NAME + ".s.ref").read().split("; Override")[0]
    launch = "; @launch grid=(256,1,1) block=(256,1,1) lds=163840"
    extra = ""
    if amp is not None:
        launch = f"; @launch kernel={NAME}_kernel grid=(256,1,1) block=(256,1,1) lds=163840\n; @launch kernel=amp_kernel grid=(1,1,1) block=(64,1,1) lds=0"
        at = "\n".join(("    " + l) if not l.endswith(":") else l for l in amp_kernel(amp))
        txt += f"\n.p2align 8\n.globl amp_kernel\n.type amp_kernel,@function\namp_kernel:\n{at}"
        extra = """.p2align 6
.amdhsa_kernel amp_kernel
  .amdhsa_next_free_vgpr 8
  .amdhsa_next_free_sgpr 32
  .amdhsa_accum_offset 8
  .amdhsa_group_segment_fixed_size 0
  .amdhsa_kernarg_size 80
  .amdhsa_user_sgpr_count 2
  .amdhsa_user_sgpr_kernarg_segment_ptr 1
  .amdhsa_system_sgpr_workgroup_id_x 1
.end_amdhsa_kernel
"""
    return f"""{hdr}{launch}
.amdgcn_target "amdgcn-amd-amdhsa--gfx950"
.text
.globl {NAME}_kernel
.p2align 8
.type {NAME}_kernel,@function
{NAME}_kernel:
{txt}
.section .rodata,"a"
.p2align 6
.amdhsa_kernel {NAME}_kernel
  .amdhsa_next_free_vgpr 512
  .amdhsa_next_free_sgpr 102
  .amdhsa_accum_offset 256
  .amdhsa_group_segment_fixed_size 0
  .amdhsa_kernarg_size 80
  .amdhsa_user_sgpr_count 2
  .amdhsa_user_sgpr_kernarg_segment_ptr 1
  .amdhsa_system_sgpr_workgroup_id_x 1
.end_amdhsa_kernel
{extra}""", names

if __name__ == "__main__":
    s, n = generate()
    open("k.s", "w").write(s)
    s, n = generate(stamps=True)
    open("k_st.s", "w").write(s)
    import json; json.dump(n, open("k_st.json", "w"))
    print(n)
```
